```python
import torch

def _softmax(x, axis=-1):
    return torch.softmax(x, dim=axis)

def _gelu(x):
    return torch.nn.functional.gelu(x, approximate='tanh')

def _silu(x):
    return torch.nn.functional.silu(x)

def _sigmoid(x):
    return torch.sigmoid(x)

def _layernorm(x, axis=-1, eps=1e-05):
    m = x.mean(dim=axis, keepdim=True)
    v = x.var(dim=axis, keepdim=True, unbiased=False)
    return (x - m) / torch.sqrt(v + eps)

def _scatter_add(tgt, idx, src, axis=0):
    return tgt.clone().index_add_(axis, idx, src)

def _segment_sum(src, seg, n):
    out = torch.zeros((n,) + src.shape[1:], dtype=src.dtype)
    return out.index_add_(0, seg, src)

def _pad(x, pw):
    flat = tuple((v for pair in reversed(pw) for v in pair))
    return torch.nn.functional.pad(x, flat)
kernel_name = 'interleave_layers__memory_aug_recurrent_mem_tr__dense_activation_gelu__prompt'

def setup_inputs():

    _w = lambda a: (lambda t: t.to(torch.bfloat16) if t.is_floating_point() else t)(torch.as_tensor(a))

    def _A_setup():
        B, S, Dm = (1, 2048, 512)
        H, Dh = (32, 128)
        M, seg = (8, 32)
        seg = min(seg, S)
        S = S // seg * seg
        return {'x': _w((lambda *s: torch.randn(*s, dtype=torch.bfloat16) * 0.05)(B, S, Dm)), 'mem0': _w((lambda *s: torch.randn(*s, dtype=torch.bfloat16) * 0.2)(B, M, Dm)), 'Wq': _w((lambda *s: torch.randn(*s, dtype=torch.bfloat16) * 1.6)(Dm, H, Dh) * Dm ** (-0.5)), 'Wk': _w((lambda *s: torch.randn(*s, dtype=torch.bfloat16) * 1.6)(Dm, H, Dh) * Dm ** (-0.5)), 'Wv': _w((lambda *s: torch.randn(*s, dtype=torch.bfloat16) * 0.2)(Dm, H, Dh) * Dm ** (-0.5)), 'Wo': _w((lambda *s: torch.randn(*s, dtype=torch.bfloat16) * 0.2)(H, Dh, Dm) * (H * Dh) ** (-0.5)), 'seg_len': seg}
    _A_in = _A_setup()

    def _B_setup():
        B, S, D, F = (1, 2048, 512, 1376)
        return {'x': _w((lambda *s: torch.randn(*s, dtype=torch.bfloat16) * 0.05)(B, S, D)), 'w1': _w((lambda *s: torch.randn(*s, dtype=torch.bfloat16) * 0.4)(D, F) * D ** (-0.5)), 'b1': _w((lambda *s: torch.randn(*s, dtype=torch.bfloat16) * 12.8)(F) * 0.01), 'w2': _w((lambda *s: torch.randn(*s, dtype=torch.bfloat16) * 0.1)(F, D) * F ** (-0.5)), 'b2': _w((lambda *s: torch.randn(*s, dtype=torch.bfloat16) * 0.8)(D) * 0.01)}
    _B_in = _B_setup()
    return {'A_x': _A_in['x'], 'A_mem0': _A_in['mem0'], 'A_Wq': _A_in['Wq'], 'A_Wk': _A_in['Wk'], 'A_Wv': _A_in['Wv'], 'A_Wo': _A_in['Wo'], 'A_seg_len': _A_in['seg_len'], 'B_x': _B_in['x'], 'B_w1': _B_in['w1'], 'B_b1': _B_in['b1'], 'B_w2': _B_in['w2'], 'B_b2': _B_in['b2']}

def reference(A_x, A_mem0, A_Wq, A_Wk, A_Wv, A_Wo, A_seg_len, B_x, B_w1, B_b1, B_w2, B_b2):

    def _A_ref(x, mem0, Wq, Wk, Wv, Wo, seg_len):
        B, S, Dm = x.shape
        H, Dh = (Wq.shape[1], Wq.shape[2])
        M = mem0.shape[1]
        scale = Dh ** (-0.5)
        n_seg = S // seg_len
        L = M + seg_len
        idx = torch.arange(L)
        mask = (idx[:, None] < M) | (idx[:, None] >= idx[None, :])
        mem = mem0
        outs = []
        for s in range(n_seg):
            xs = x[:, s * seg_len:(s + 1) * seg_len, :].clone()
            h = torch.concatenate([mem, xs], axis=1)
            q = torch.einsum('btd,dhe->bhte', h, Wq)
            k = torch.einsum('btd,dhe->bhte', h, Wk)
            v = torch.einsum('btd,dhe->bhte', h, Wv)
            scores = torch.einsum('bhqe,bhke->bhqk', q, k) * scale
            scores = torch.where(mask[None, None], scores, -1000000000.0)
            p = _softmax(scores, axis=-1)
            o = torch.einsum('bhqk,bhke->bhqe', p, v)
            o = torch.einsum('bhte,hed->btd', o, Wo)
            mem = o[:, :M, :].clone()
            outs.append(o[:, M:, :])
        return torch.concatenate(outs, axis=1)

    def _B_ref(x, w1, b1, w2, b2):
        h = torch.einsum('bsd,df->bsf', x, w1) + b1
        h = _gelu(h)
        return torch.einsum('bsf,fd->bsd', h, w2) + b2
    x = A_x
    x = x + _A_ref(_layernorm(x, axis=-1), A_mem0, A_Wq, A_Wk, A_Wv, A_Wo, A_seg_len)
    x = x + _B_ref(_layernorm(x, axis=-1), B_w1, B_b1, B_w2, B_b2)
    x = x + _A_ref(_layernorm(x, axis=-1), A_mem0, A_Wq, A_Wk, A_Wv, A_Wo, A_seg_len)
    x = x + _B_ref(_layernorm(x, axis=-1), B_w1, B_b1, B_w2, B_b2)
    return x
```

```python
import re
TRANS = ("v_exp_f32","v_log_f32","v_rcp_f32","v_rsq_f32","v_sqrt_f32","v_sin_f32","v_cos_f32")
def regs_of(tok):
    tok = tok.strip()
    if tok.startswith("-"): tok = tok[1:]
    if tok.startswith("|"): tok = tok.strip("|")
    m = re.fullmatch(r"([vas])(\d+)", tok)
    if m: return {(m.group(1), int(m.group(2)))}
    m = re.fullmatch(r"([vas])\[(\d+):(\d+)\]", tok)
    if m: return {(m.group(1), i) for i in range(int(m.group(2)), int(m.group(3)) + 1)}
    if tok == "vcc": return {("s", 106), ("s", 107)}
    return set()

class Asm:
    def __init__(self):
        self.lines = []
        self.pos = 0
        self.ev = []
        self.uid = 0
    def raw(self, s):
        self.lines.append(s)
    def comment(self, s):
        self.lines.append("    ; " + s)
    def newlabel(self, base="L"):
        self.uid += 1
        return f"{base}_{self.uid}"
    def label(self, name, pad=True):
        if pad: self.flush()
        self.lines.append(f"{name}:")
    def flush(self):
        need = 0
        for (p, kind, regs, ex) in self.ev:
            w = {"mfma": 8, "valu": 2, "trans": 2, "dot": 3, "sgpr": 5, "store": 2, "mfmac": 3}[kind]
            need = max(need, p + w + 1 - self.pos)
        if need > 0: self.nop(need)
        self.ev = []
    def nop(self, n):
        while n > 0:
            k = min(n, 16)
            self.lines.append(f"s_nop {k-1}")
            self.pos += k; n -= k
    def __call__(self, text):
        for ln in text.strip().split("\n"):
            ln = ln.split(";")[0].strip()
            if ln: self.emit(ln)
    def emit(self, ln):
        parts = ln.split(None, 1)
        mn = parts[0]
        rest = parts[1] if len(parts) > 1 else ""
        ops = []; cur = ""; depth = 0
        for ch in rest:
            if ch == "[": depth += 1
            if ch == "]": depth -= 1
            if ch == "," and depth == 0: ops.append(cur.strip()); cur = ""
            else: cur += ch
        if cur.strip(): ops.append(cur.strip())
        mods = ""
        if ops:
            sp = ops[-1].split(None, 1)
            ops[-1] = sp[0]
            mods = sp[1] if len(sp) > 1 else ""
        R = [regs_of(o) for o in ops]
        dst = set(); src = set(); kind = "other"; srcC = set(); ab = set()
        isdpp = any(k in mods for k in ("quad_perm", "row_", "wave_", "bank_mask"))
        if mn.startswith("v_mfma"):
            kind = "mfma"; dst = R[0]; ab = R[1] | R[2]; srcC = R[3]; src = ab | srcC
        elif mn.startswith("v_smfmac"):
            kind = "mfma"; dst = R[0]; ab = R[1] | R[2] | R[3]; srcC = R[0]; src = ab | srcC
        elif mn.startswith("v_"):
            kind = "valu"
            if mn.startswith("v_cmp"):
                dst = R[0]; src = set().union(*R[1:])
            elif "permlane" in mn and "swap" in mn:
                dst = R[0] | R[1]; src = R[0] | R[1]
            elif mn.startswith(("v_add_co", "v_sub_co", "v_addc_co", "v_subb_co")):
                dst = R[0] | R[1]; src = set().union(*R[2:])
            else:
                dst = R[0]; src = set().union(*R[1:]) if len(R) > 1 else set()
                if mn.startswith(("v_fmac", "v_dot2c", "v_pk_fmac", "v_writelane", "v_mac")): src |= R[0]
                if mn.startswith("v_cndmask") and len(ops) == 3: src |= regs_of("vcc")
        elif mn.startswith("buffer_load"):
            kind = "vmem"; dst = R[0]; src = set().union(*R[1:])
        elif mn.startswith(("buffer_store", "buffer_atomic")):
            kind = "vmem"; src = set().union(*R)
            if mn.startswith("buffer_atomic") and "sc0" in mods: dst = R[0]
        elif mn.startswith(("ds_read", "ds_bpermute", "ds_swizzle")):
            kind = "ds"; dst = R[0]; src = set().union(*R[1:])
        elif mn.startswith("ds_"):
            kind = "ds"; src = set().union(*R)
        need = 0
        isvalu = kind == "valu"
        for (p, k, regs, ex) in self.ev:
            w = -1
            if k in ("valu", "trans", "dot"):
                if kind == "mfma" and regs & src: w = 3 if k == "dot" else 2
                if isvalu and regs & src:
                    if "permlane" in mn or isdpp: w = max(w, 2)
                    if mn.startswith(("v_readlane", "v_readfirstlane")): w = max(w, 1)
                    if k == "trans" and mn not in TRANS: w = max(w, 1)
                if k == "dot" and (regs & (src | dst)):
                    if not (mn == ex and not (regs & (R[1] | R[2]))): w = max(w, 3)
                if k == "trans" and kind in ("vmem", "ds") and regs & src: w = max(w, 1)
            elif k == "mfma":
                if kind == "mfma":
                    if regs & ab: w = 8
                    elif regs & srcC: w = ((2 if '16x16x16' in ex else 0) if (regs == srcC and ex == mn) else 6)
                    elif regs & dst: w = 6
                elif kind in ("valu", "vmem", "ds") and regs & (src | dst): w = 8
            elif k == "mfmac":
                if kind in ("valu",) and regs & dst: w = 3
            elif k == "sgpr":
                if kind == "vmem" and regs & src: w = 5
                if isvalu and regs & src: w = 4 if mn.startswith(("v_readlane", "v_writelane")) else 2
            elif k == "store":
                if regs & dst: w = 2
            if w >= 0: need = max(need, p + w + 1 - self.pos)
        if need > 0: self.nop(need)
        self.lines.append(ln)
        p = self.pos
        if mn == "s_nop": self.pos += int(ops[0]) + 1
        else: self.pos += 1
        if kind == "mfma":
            self.ev.append((p, "mfma", dst, mn))
            if srcC: self.ev.append((p, "mfmac", srcC, None))
        elif kind == "valu":
            vd = {r for r in dst if r[0] != "s"}; sd = {r for r in dst if r[0] == "s"}
            if vd:
                k = "trans" if mn in TRANS else ("dot" if mn.startswith("v_dot") else "valu")
                self.ev.append((p, k, vd, mn))
            if sd: self.ev.append((p, "sgpr", sd, None))
        elif kind == "vmem" and mn.startswith("buffer_store") and ("x4" in mn or "x3" in mn):
            self.ev.append((p, "store", R[0], None))
        self.ev = [e for e in self.ev if self.pos - e[0] < 12]
        if mn.startswith(("s_cbranch", "s_branch")):
            pass
    def text(self):
        return "\n".join(self.lines) + "\n"
```

```python
from gen_common import *
import os
NEG = f2u(-1e30)
PCS = int(os.environ.get('PCS', '8192')); PTS = 0x2000; PRM = '0xffff7fff'
PD0, PG0, PD1, PG1 = [int(x) for x in os.environ.get('CPOLL', '32,-1,32,-1').split(',')]
FSP = int(os.environ.get('FSP', '1'))
C_IMG = 131072; C_SC = 8192; C_OX = 21504; C_SEL = 23552; SCS = 3200

def role_c(a, l):
    P = f"C{l}"
    vL16=1; vIDX=2; vID=4; vCM=6; vONE=10; vONEM=14; vIMGW=3; vPST=16; vPLD=17; vPUBST=18; vOXW=19; vLB=20; vWVB=21; vL8=22; vFLG=23
    AF=24; ACC=40; ACCV=56; KVR=64; W=80
    S_T=62; S_FAST=63; S_KV=64; S_PUB=66; S_PARTW=67; S_PARTR=68; S_PUBW=69; S_ZV=72; S_FL=73; S_C1=70
    a(f"""v_lshlrev_b32 v{vL16}, 4, v0
    v_and_b32 v24, 15, v0
    v_lshrrev_b32 v25, 4, v0
    v_mov_b32 v32, -1
    v_mov_b32 v33, -1
    v_mov_b32 v34, -1
    v_mov_b32 v35, -1""")
    a(f"""s_lshl_b32 s60, s{S_H}, 13
    s_lshl_b32 s61, s{S_WAVE}, 11
    s_add_u32 s60, s60, s61
    s_add_u32 s60, s60, {PART}
    s_lshl_b32 s61, s{S_L}, 20
    s_add_u32 s60, s60, s61
    s_add_u32 s61, s60, 0x80000""")
    for k in range(2):
        a(f"buffer_store_dwordx4 v[32:35], v{vL16}, {WS}, s60 offen offset:{k*1024} sc1")
        a(f"buffer_store_dwordx4 v[32:35], v{vL16}, {WS}, s61 offen offset:{k*1024} sc1")
    a(f"""s_lshr_b32 s60, s{S_H}, 3
    s_lshl_b32 s60, s60, 1
    s_lshr_b32 s61, s{S_WAVE}, 1
    s_add_u32 s60, s60, s61
    s_lshl_b32 s{S_PUBW}, s60, 10
    s_and_b32 s60, s{S_H}, 1
    s_lshl_b32 s60, s60, 6
    s_add_u32 s{S_PUBW}, s{S_PUBW}, s60
    s_bfe_u32 s60, s{S_H}, 0x10002
    s_lshl_b32 s60, s60, 5
    s_add_u32 s{S_PUBW}, s{S_PUBW}, s60
    s_bfe_u32 s60, s{S_H}, 0x10001
    s_lshl_b32 s60, s60, 7
    s_add_u32 s{S_PUBW}, s{S_PUBW}, s60
    s_and_b32 s60, s{S_WAVE}, 1
    s_lshl_b32 s60, s60, 9
    s_add_u32 s{S_PUBW}, s{S_PUBW}, s60
    s_add_u32 s{S_PUBW}, s{S_PUBW}, {PUB}
    s_lshl_b32 s60, s{S_L}, 22
    s_add_u32 s{S_PUBW}, s{S_PUBW}, s60
    v_and_b32 v26, 3, v0
    v_lshrrev_b32 v27, 5, v0
    v_and_b32 v28, 1, v0
    v_lshlrev_b32 v{vPUBST}, 3, v28
    v_bfe_u32 v28, v0, 1, 1
    v_lshl_add_u32 v{vPUBST}, v28, 8, v{vPUBST}
    v_bfe_u32 v28, v0, 4, 1
    v_lshl_add_u32 v{vPUBST}, v28, 4, v{vPUBST}
    s_lshl_b32 s77, s{S_H}, 8
    s_lshl_b32 s60, s{S_WAVE}, 6
    s_add_u32 s77, s77, s60
    s_lshl_b32 s60, s{S_L}, 22
    s_add_u32 s77, s77, s60
    s_add_u32 s77, s77, {PUB + PTS}
    s_mov_b64 exec, 0xf
    buffer_store_dwordx4 v[32:35], v{vL16}, {WS}, s77 offen sc1
    s_mov_b64 exec, -1
    s_add_u32 s77, s77, {PTS}""")
    Lc = a.newlabel("Lc1")
    a(f"s_cmp_eq_u32 s{S_L}, 0\ns_cbranch_scc1 {Lc}")
    arrive(a, 30, 31)
    late_start(a, DLY[0])
    a.label(Lc)
    a(f"""v_lshlrev_b32 v{vL16}, 4, v0
    s_mov_b32 s92, 0x00ff00ff
    s_mov_b32 s93, 0x00ff00ff
    s_mov_b32 s94, 0x000f000f
    s_mov_b32 s95, 0
    v_mov_b32 v28, 0x8888
    v_mov_b32 v29, 0xdddd
    v_cmp_gt_u32 vcc, 8, v24
    v_cndmask_b32 v{vIDX}, v29, v28, vcc
    v_lshlrev_b32 v28, 2, v25
    v_sub_u32 v28, v24, v28
    v_mov_b32 v29, 0x3f80
    v_mov_b32 v30, 0x3f800000
    v_cmp_eq_u32 vcc, 0, v28
    v_cndmask_b32 v{vID}, 0, v29, vcc
    v_cmp_eq_u32 vcc, 1, v28
    v_cndmask_b32 v{vID}, v{vID}, v30, vcc
    v_cmp_eq_u32 vcc, 2, v28
    v_cndmask_b32 v{vID+1}, 0, v29, vcc
    v_cmp_eq_u32 vcc, 3, v28
    v_cndmask_b32 v{vID+1}, v{vID+1}, v30, vcc
    v_mov_b32 v29, {hex(NEG)}
    v_mov_b32 v30, 0x3f803f80
    v_cmp_gt_u32 vcc, 2, v25
    v_cndmask_b32 v{vCM}, 0, v29, vcc
    v_mov_b32 v{vONEM}, 0
    v_mov_b32 v{vCM+1}, v{vCM}
    v_mov_b32 v{vCM+2}, v{vCM}
    v_mov_b32 v{vCM+3}, v{vCM}
    v_mov_b32 v{vONEM+1}, v{vONEM}
    v_mov_b32 v{vONE}, v30
    v_mov_b32 v{vONE+1}, v30
    v_mov_b32 v{vONE+2}, v30
    v_mov_b32 v{vONE+3}, v30
    v_lshrrev_b32 v28, 3, v0
    v_bfe_u32 v29, v0, 2, 1
    v_and_b32 v30, 3, v0
    v_lshl_add_u32 v28, v29, 3, v28
    v_lshl_add_u32 v28, v30, 4, v28
    s_lshl_b32 s60, s{S_WAVE}, 11
    s_add_u32 s60, s60, {C_IMG}
    v_lshl_add_u32 v{vIMGW}, v0, 4, s60
    v_lshlrev_b32 v28, 4, v24
    v_lshl_add_u32 v{vPST}, v25, 13, v28
    v_lshrrev_b32 v28, 2, v0
    v_lshlrev_b32 v28, 8, v28
    v_lshl_add_u32 v{vPLD}, v26, 4, v28
    ; OXW: s2*1024 + (m + 16*(2(w&1)+(g>>1)))*16 + (g&1)*8
    s_and_b32 s60, s{S_WAVE}, 1
    s_lshl_b32 s60, s60, 9
    s_lshr_b32 s61, s{S_WAVE}, 1
    s_lshl_b32 s61, s61, 10
    s_add_u32 s60, s60, s61
    s_add_u32 s60, s60, {C_IMG + C_OX}
    v_lshlrev_b32 v28, 4, v24
    v_lshl_add_u32 v28, v27, 8, v28
    v_and_b32 v29, 1, v25
    v_lshl_add_u32 v28, v29, 3, v28
    v_add_u32 v{vOXW}, s60, v28
    v_add_u32 v{vLB}, {C_IMG}, v{vL16}
    s_lshl_b32 s60, s{S_WAVE}, 15
    v_add_u32 v{vWVB}, s60, v{vL16}
    v_lshlrev_b32 v{vL8}, 3, v0
    s_mov_b32 s{S_C1}, {hex(f2u(C1))}""")
    nat = lambda u, i: 32 * u + i
    srd(a, 12, 26, 4096 * 1024)
    a(f"""s_lshl_b32 s60, s{S_H}, 17
    s_lshl_b32 s61, s{S_WAVE}, 8
    s_add_u32 s60, s60, s61
    v_lshlrev_b32 v26, 13, v25
    v_lshl_add_u32 v26, v24, 4, v26
    v_add_u32 v26, s60, v26""")
    for u in range(4):
        for i in range(8):
            if i % 4 == 0: a(f"s_mov_b32 s60, {nat(u, i) * 1024}")
            a(f"buffer_load_dwordx4 v[{128+u*32+i*4}:{128+u*32+i*4+3}], v26, {SW}, s60 offen offset:{(i%4)*1024}")
    a(f"""s_lshl_b32 s60, s{S_H}, 8
    s_lshl_b32 s61, s{S_WAVE}, 6
    s_add_u32 s60, s60, s61
    v_lshlrev_b32 v26, 16, v25
    v_lshl_add_u32 v26, v24, 2, v26
    v_add_u32 v26, s60, v26""")
    a(f"s_lshl_b32 s74, s{S_WAVE}, 20")
    def sink(u, sc):
        for c in range(2):
            a(f"ds_write_b128 v{vWVB}, v[{sc+c*4}:{sc+c*4+3}] offset:{c*16384+u*1024}")
    def post0():
        Lc = a.newlabel("Lc1")
        a(f"s_cmp_lg_u32 s{S_L}, 0\ns_cbranch_scc1 {Lc}")
        arrive(a, 30, 31, False)
        a.label(Lc)
    jobs = [dict(pre=(lambda plo=plo: srd(a, 12, plo, 512 * 8192)), vaddr=26, pitch=8192, rowfn=nat, nu=16, sx=74,
                 dest=(lambda c, u, j, mi=mi: ("a", mi * 128 + c * 64 + u * 4 + j)), sink=(sink if mi == 2 else None),
                 post=(post0 if mi == 0 else None)) for mi, plo in enumerate((20, 22, 24))]
    load_w_multi(a, SW, jobs, 32)
    for p in range(2):
        for k in range(0, 64, 2): a(f"v_pk_mov_b32 v[{32+k}:{33+k}], v[{128+64*p+k}:{129+64*p+k}], v[{128+64*p+k}:{129+64*p+k}] op_sel:[0,1]")
        for uu in range(2):
            for c in range(8):
                for j in range(4):
                    b = 32 + uu * 32
                    a(f"v_perm_b32 v{128+64*p+c*8+uu*4+j}, v{b+(2*j+1)*4+(c>>1)}, v{b+(2*j)*4+(c>>1)}, s{SEL_LO if (c & 1) == 0 else SEL_HI}")
    srd(a, 12, 18, 8192)
    a(f"""v_and_b32 v26, 7, v0
    v_lshlrev_b32 v26, 10, v26
    v_lshl_add_u32 v26, v25, 5, v26
    s_lshl_b32 s60, s{S_WAVE}, 8
    buffer_load_dwordx4 v[32:35], v26, {SW}, s60 offen
    buffer_load_dwordx4 v[36:39], v26, {SW}, s60 offen offset:16
    buffer_load_dwordx4 v[40:43], v26, {SW}, s60 offen offset:128
    buffer_load_dwordx4 v[44:47], v26, {SW}, s60 offen offset:144
    v_mov_b32 v28, s{SEL_LO}
    v_mov_b32 v29, s{SEL_HI}
    v_cmp_gt_u32 vcc, 8, v24
    v_cndmask_b32 v28, v29, v28, vcc
    s_lshl_b32 s60, s{S_WAVE}, 11
    v_add_u32 v29, s60, v{vLB}
    s_waitcnt vmcnt(0)""")
    for k in range(2):
        for q in range(4):
            a(f"v_perm_b32 v{KVR+k*4+q}, v{32+k*8+2*q+1}, v{32+k*8+2*q}, v28")
        a(f"ds_write_b128 v29, v[{KVR+k*4}:{KVR+3+k*4}] offset:{k*1024}")
    a(f"""v_and_b32 v28, 1, v0
    v_lshlrev_b32 v28, 4, v28
    v_mov_b32 v29, 0x3c00
    v_lshlrev_b32 v28, v28, v29
    v_bfe_u32 v29, v0, 1, 2""")
    for j in range(4):
        a(f"v_cmp_eq_u32 vcc, {j}, v29\nv_cndmask_b32 v{32+j}, 0, v28, vcc")
    a(f"ds_write_b128 v{vLB}, v[32:35] offset:{C_SEL}")
    a.split()
    stamp(a, 0)
    wait_all(a, 32, 33, S_FAST)
    if l == 1 and PW: prewarm(a, "C")
    a(f"""s_lshl_b32 s60, s{S_H}, 2
    s_add_u32 s60, s60, s{S_WAVE}
    s_add_u32 s60, s60, {l*64*128}
    s_lshl_b32 s{S_KV}, s60, 12
    s_add_u32 s{S_KV}, s{S_KV}, {KV}
    s_lshl_b32 s{S_ZV}, s60, 11
    s_add_u32 s{S_ZV}, s{S_ZV}, {ZV - l*64*128*2048 + l*8*128*2048}
    s_mov_b32 s71, s{S_ZV}
    s_lshl_b32 s{S_FL}, s60, 2
    s_add_u32 s{S_FL}, s{S_FL}, {FQB}
    s_lshl_b32 s{S_PUB}, s{S_WAVE}, 11
    s_add_u32 s{S_PUB}, s{S_PUB}, {PUB + l*0x400000}

    s_lshl_b32 s{S_PARTW}, s{S_WAVE}, 16
    s_lshl_b32 s60, s{S_H}, 8
    s_add_u32 s{S_PARTW}, s{S_PARTW}, s60
    s_add_u32 s{S_PARTW}, s{S_PARTW}, {PART + l*0x100000}
    s_lshl_b32 s{S_PARTR}, s{S_H}, 13
    s_lshl_b32 s60, s{S_WAVE}, 6
    s_add_u32 s{S_PARTR}, s{S_PARTR}, s60
    s_add_u32 s{S_PARTR}, s{S_PARTR}, {PART + l*0x100000}
    s_mov_b32 s{S_T}, 0
    v_mov_b32 v31, 0""")
    poll_flags(a, 31, f"s{S_FL}", 32, "1", 20, imm=FQKV)
    a(f"v_cmp_eq_u32 vcc, 0, v0\nv_cndmask_b32 v{vFLG}, 0, 1, vcc")
    stamp(a, 1)
    tick_init(a)
    lg = Q(a, "lgkmcnt", 15); vm = Q(a, "vmcnt", 63)
    S_FKM = 71; S_PZ = 78
    ORDER = list(range(16))
    slot_of = {p: k % 6 for k, p in enumerate(ORDER)}
    def wv_issue(p):
        r = W + slot_of[p] * 8; s8, c = p >> 1, p & 1
        a(f"ds_read_b128 v[{r}:{r+3}], v{vWVB} offset:{c*16384+s8*2048}")
        a(f"ds_read_b128 v[{r+4}:{r+7}], v{vWVB} offset:{c*16384+s8*2048+1024}")
        lg.issue(("wv0", p)); lg.issue(("wv", p))
    afr = lambda k: (KVR + 4 * k) if k < 2 else AF + ((k - 2) % 4) * 4
    def af_issue(k, tag="af"):
        r = afr(k)
        a(f"ds_read_b128 v[{r}:{r+3}], v{vONEM + (1 if (k >> 1) == 2 else 0)} offset:{(k&1)*1024}"); lg.issue((tag, k))
    def zero(r0, n):
        for r in range(r0, r0 + n, 2): a(f"v_pk_mov_b32 v[{r}:{r+1}], 0, 0")
    def vsm(p):
        s8, c = p >> 1, p & 1
        lg.wait(("wv", p))
        r = W + slot_of[p] * 8; af = afr(s8)
        a(f"v_smfmac_f32_16x16x64_bf16 v[{ACCV+c*4}:{ACCV+c*4+3}], v[{af}:{af+3}], v[{r}:{r+7}], v{vIDX}")
    vq = []
    def vstep(n=1):
        for _ in range(n):
            if not vq: return
            k = vq.pop(0); p = ORDER[k]
            vsm(p)
            if k + 6 < 16: wv_issue(ORDER[k + 6])
    def mode_stores(stores):
        L1 = a.newlabel("Lslow"); L2 = a.newlabel("Ljoin")
        a(f"s_cmp_eq_u32 s{S_FAST}, 0\ns_cbranch_scc1 {L1}")
        for s in stores: a(s.format(m=""))
        a(f"s_branch {L2}")
        a.label(L1, pad=False)
        for s in stores: a(s.format(m="sc1"))
        a.label(L2, pad=False)
    vSCR = vL8
    a(f"""v_bfe_u32 v24, v0, 3, 1
    v_mul_u32_u24 v24, {SCS}, v24
    v_and_b32 v25, 0x37, v0
    v_lshl_add_u32 v24, v25, 4, v24
    v_add_u32 v{vSCR}, {C_IMG + C_SC}, v24
    s_mul_i32 s96, s{S_WAVE}, {SCS}
    s_add_u32 s96, s96, {C_SC}
    s_add_u32 s{S_PZ}, s{S_PARTR}, 0x80000
    s_add_u32 s76, s{S_PZ}, 4096""")
    zero(ACC, 24)
    for k in range(6): wv_issue(ORDER[k])
    a("s_waitcnt lgkmcnt(0)")
    lg.clear()
    a(f"s_branch L_{P}_B1")
    a.label(f"L_{P}_loop")
    def pipe_poll(tag, loads, A, B, X, done, code, gap):
        def chk(R):
            a(f"""s_waitcnt vmcnt(2)
            v_max3_u32 v{X}, v{R}, v{R+1}, v{R+2}
            v_max3_u32 v{X+1}, v{R+3}, v{R+4}, v{R+5}
            v_max3_u32 v{X}, v{X}, v{R+6}, v{R+7}
            v_max_u32 v{X}, v{X}, v{X+1}
            v_cmp_eq_u32 vcc, -1, v{X}""")
        if gap < 0:
            if "fine" in os.environ.get("GENOPT", ""): tick(a, 6 if tag == "pub" else 5)
            a.label(f"L_{P}_{tag}", pad=False)
            loads(A)
            if "fine" in os.environ.get("GENOPT", ""): a(f"s_add_u32 s{88 if tag == 'pub' else 89}, s{88 if tag == 'pub' else 89}, 1000")
            timeout(a, code)
            a(f"""s_waitcnt vmcnt(0)
            v_max3_u32 v{X}, v{A}, v{A+1}, v{A+2}
            v_max3_u32 v{X+1}, v{A+3}, v{A+4}, v{A+5}
            v_max3_u32 v{X}, v{X}, v{A+6}, v{A+7}
            v_max_u32 v{X}, v{X}, v{X+1}
            v_cmpx_eq_u32 vcc, -1, v{X}
            s_cbranch_vccnz L_{P}_{tag}
            s_mov_b64 exec, -1""")
            if "fine" in os.environ.get("GENOPT", ""): tick(a, 7 if tag == "pub" else 10)
            done(A)
            return
        loads(A)
        if gap: a(f"s_nop {gap-1}")
        a.label(f"L_{P}_{tag}", pad=False)
        loads(B)
        chk(A)
        a(f"s_cbranch_vccz L_{P}_{tag}A")
        loads(A)
        chk(B)
        a(f"s_cbranch_vccz L_{P}_{tag}B")
        timeout(a, code)
        a(f"s_branch L_{P}_{tag}")
        a.label(f"L_{P}_{tag}B", pad=False)
        done(B)
        a(f"s_branch L_{P}_{tag}J")
        a.label(f"L_{P}_{tag}A", pad=False)
        done(A)
        a.label(f"L_{P}_{tag}J", pad=False)
    def pub_loads(R):
        a(f"""buffer_load_dwordx4 v[{R}:{R+3}], v{vL16}, {WS}, s{S_PUB} offen sc1
        buffer_load_dwordx4 v[{R+4}:{R+7}], v{vL16}, {WS}, s{S_PUB} offen offset:1024 sc1""")
    def pub_done(R):
        a(f"""ds_write_b128 v{vIMGW}, v[{R}:{R+3}]
        ds_write_b128 v{vIMGW}, v[{R+4}:{R+7}] offset:1024""")
    for _ in range(PD0 // 16): a("s_nop 15")
    pipe_poll("pub", pub_loads, KVR, KVR + 8, AF, pub_done, 21, PG0)
    a.label(f"L_{P}_B1", pad=False)
    def kld():
        for k in range(2):
            a(f"buffer_load_dwordx4 v[{KVR+8+k*4}:{KVR+8+k*4+3}], v{vL16}, {WS}, s{S_KV} offen offset:{k*1024} sc1")
    kld()
    a(f"v_xor_b32 v{vONEM}, 0x800, v{vIMGW}\nv_xor_b32 v{vONEM+1}, 0x1000, v{vIMGW}\ns_waitcnt lgkmcnt(0)")
    tick(a, 0)
    stamp2(a, 3, S_T)
    a("s_barrier")
    lg.clear(); vm.clear(); vm.issue(("kv", 0)); vm.issue(("kv", 1))
    for k in range(2, 6): af_issue(k)
    a(f"v_xor_b32 v{vONEM}, 0x1000, v{vONEM}")
    vq[:] = list(range(16))
    def qk(s8):
        lg.wait(("af", s8))
        af = afr(s8)
        for t in range(4):
            a(f"v_smfmac_f32_16x16x64_bf16 v[{ACC+t*4}:{ACC+t*4+3}], v[{af}:{af+3}], a[{t*64+s8*8}:{t*64+s8*8+7}], v{vIDX}")
            if s8 < 4 and t in (0, 2): vstep(1)
        if s8 in (2, 3): af_issue(s8 + 4)
    qk(0); qk(1)
    Lnk = a.newlabel("Lnokv"); Lok = a.newlabel("Lok"); Lnw = a.newlabel("Lnw")
    a(f"""v_readlane_b32 s60, v{vFLG}, 0
    v_readlane_b32 s65, v{vFLG}, 8
    s_cmp_ge_u32 s{S_T}, 63
    s_cbranch_scc1 {Lnk}
    s_cmp_lg_u32 s60, 0
    s_cbranch_scc1 {Lok}""")
    Lp = a.newlabel("Lkvp")
    a.label(Lp)
    a(f"buffer_load_dword v{vFLG}, off, {WS}, s{S_FL} sc1")
    timeout(a, 22)
    a(f"""s_waitcnt vmcnt(0)
    v_cmp_eq_u32 vcc, 0, v{vFLG}
    s_cbranch_vccnz {Lp}""")
    kld()
    a.label(Lok)
    for k in range(2, 4):
        a(f"buffer_load_dwordx4 v[{KVR+k*4-8}:{KVR+k*4-5}], v{vL16}, {WS}, s{S_KV} offen offset:{k*1024} sc1"); vm.issue(("kv", k))
    a(f"""s_cmp_eq_u32 s65, 0
    s_cselect_b32 s60, 0, {128*4096}
    s_add_u32 s60, s60, s{S_KV}
    s_and_b32 s60, s60, {KVM}
    v_lshlrev_b32 v{vFLG}, 2, v{vL16}
    buffer_load_dword v{vFLG}, v{vFLG}, {WS}, s60 offen sc1""")
    vm.issue("flag")
    a.label(Lnk)
    for s8 in range(2, 8): qk(s8)
    a(f"v_mov_b32 v{vONEM}, 0\nv_mov_b32 v{vONEM+1}, 0")
    tick(a, 1)
    vstep(2)
    ZP = ACC + 8; F = ACC + 12; T = ACC
    for c in range(2):
        for r in range(4):
            swapadd(a, 32, ACC + c * 4 + r, ACC + 8 + c * 4 + r, ACC + c * 4 + r)
        a(f"v_cvt_pk_bf16_f32 v{ZP+4*c}, v{ACC+c*4}, v{ACC+c*4+1}\nv_cvt_pk_bf16_f32 v{ZP+4*c+1}, v{ACC+c*4+2}, v{ACC+c*4+3}")
        a(f"v_mfma_f32_16x16x16_bf16 v[{ACC+c*4}:{ACC+c*4+3}], v[{ZP+4*c}:{ZP+4*c+1}], v[{vID}:{vID+1}], 0")
        vstep(1)
    vstep(1)
    for r in range(4):
        a(f"v_cvt_pk_bf16_f32 v{F+r}, v{ACC+r}, v{ACC+4+r}")
    a(f"s_cmp_ge_u32 s{S_T}, 63\ns_cbranch_scc1 L_{P}_last")
    lg_save = list(lg.q); vq_save = list(vq)
    vm.wait(("kv", 1))
    a(f"v_mfma_f32_16x16x32_bf16 v[{T}:{T+3}], v[{F}:{F+3}], v[{F}:{F+3}], v[{vCM}:{vCM+3}]")
    for tt in range(2):
        a(f"v_mfma_f32_16x16x32_bf16 v[{T+4+tt*4}:{T+7+tt*4}], v[{KVR+8+tt*4}:{KVR+8+tt*4+3}], v[{F}:{F+3}], 0")
    vstep(3)
    a(f"v_add_u32 v{KVR+12}, s96, v{vLB}")
    a("s_mov_b64 exec, s[92:93]")
    for k in range(3):
        a(f"ds_write_b128 v{KVR+12}, v[{T+4*k}:{T+4*k+3}] offset:{k*1024}"); lg.issue(("scw", k))
    a("s_mov_b64 exec, -1")
    lg.wait(("scw", 2))
    tick(a, 2)
    a("s_barrier")
    VMA = W; VMF = W + 4; OP = W + 8; OF_ = AF
    OA = [W + 16 + 4 * k for k in range(8)]
    def vpack():
        for c in range(2):
            a(f"v_cvt_pk_bf16_f32 v{VMA+2*c}, v{ACCV+c*4}, v{ACCV+c*4+1}\nv_cvt_pk_bf16_f32 v{VMA+2*c+1}, v{ACCV+c*4+2}, v{ACCV+c*4+3}")
    def vfold():
        for r in range(4):
            swapadd(a, 32, ACCV + r, ACCV + 4 + r, ACCV + r)
        a(f"v_cvt_pk_bf16_f32 v{VMF}, v{ACCV}, v{ACCV+1}\nv_cvt_pk_bf16_f32 v{VMF+1}, v{ACCV+2}, v{ACCV+3}")
        a(f"v_lshlrev_b32 v{VMF+2}, 3, v0")
        a(f"buffer_store_dwordx2 v[{VMF}:{VMF+1}], v{VMF+2}, {WS}, s{S_ZV} offen offset:1024 sc1")
    S2 = [AF, AF + 4, AF + 8]
    for j in range(3):
        a(f"ds_read_b128 v[{T+4*j}:{T+4*j+3}], v{vSCR} offset:{j*1024}"); lg.issue(("s1", j))
        a(f"ds_read_b128 v[{S2[j]}:{S2[j]+3}], v{vSCR} offset:{2*SCS+j*1024}"); lg.issue(("s2", j))
    assert not vq
    a(f"buffer_store_dwordx4 v[{F}:{F+3}], v{vL16}, {WS}, s{S_ZV} offen sc1"); vm.issue("z")
    def mzero(r0): a.a.raw(f"v_mfma_f32_32x32x8bf16_1k v[{r0}:{r0+15}], v[{vONEM}:{vONEM+1}], v[{vONEM}:{vONEM+1}], 0") if a.on else None
    mzero(OA[0])
    vpack()
    vfold(); vm.issue("vmst")
    mzero(OA[4])
    for j in range(3):
        lg.wait(("s2", j))
        for h2 in range(2):
            a(f"v_pk_add_f32 v[{T+j*4+2*h2}:{T+j*4+2*h2+1}], v[{T+j*4+2*h2}:{T+j*4+2*h2+1}], v[{S2[j]+2*h2}:{S2[j]+2*h2+1}]")
    for i in range(12):
        a(f"v_add_f32_dpp v{T+i}, v{T+i}, v{T+i} row_ror:8 row_mask:0xf bank_mask:0xf")
    PT = KVR + 8; PM = KVR + 12; PD = KVR + 14; SUM = T; O = T + 4
    class Inter:
        def __init__(s): s.n = 0
        def __call__(s, t):
            a(t); s.n += 1
            if s.n % 5 == 0: vstep(1)
    softmax12(Inter(), T, F, F + 1, S_C1, PT, PM)
    vstep(16)
    for k in range(2):
        a(f"v_mov_b32 v{PD+k}, v{PM+k}")
    a(f"v_mfma_f32_16x16x16_bf16 v[{SUM}:{SUM+3}], v[{vONE}:{vONE+1}], v[{PM}:{PM+1}], 0")
    for k in range(2):
        a(f"v_mov_b32 v{F+k}, v{PM+k}")
    for k in range(2):
        a(f"v_permlane32_swap_b32 v{F+k}, v{PD+k}")
    vm.wait(("kv", 3))
    for c in range(2):
        a(f"v_mfma_f32_16x16x32_bf16 v[{O+c*4}:{O+c*4+3}], v[{KVR+c*4}:{KVR+3+c*4}], v[{PT}:{PT+3}], 0")
    a(f"v_mfma_f32_16x16x32_bf16 v[{SUM}:{SUM+3}], v[{vONE}:{vONE+3}], v[{PT}:{PT+3}], v[{SUM}:{SUM+3}]")
    for c in range(2):
        a(f"v_mfma_f32_16x16x16_bf16 v[{O+c*4}:{O+c*4+3}], v[{VMA+2*c}:{VMA+2*c+1}], v[{PD}:{PD+1}], v[{O+c*4}:{O+c*4+3}]")
    a(f"v_rcp_f32 v{SUM}, v{SUM}")
    for c in range(2):
        for h2 in range(2):
            a(f"v_pk_mul_f32 v[{O+c*4+2*h2}:{O+c*4+2*h2+1}], v[{O+c*4+2*h2}:{O+c*4+2*h2+1}], v[{SUM}:{SUM+1}] op_sel_hi:[1,0]")
    for c in range(2):
        a(f"v_cvt_pk_bf16_f32 v{OP+2*c}, v{O+c*4}, v{O+c*4+1}\nv_cvt_pk_bf16_f32 v{OP+2*c+1}, v{O+c*4+2}, v{O+c*4+3}")
    a("s_mov_b64 exec, s[92:93]")
    for c in range(2):
        a(f"ds_write_b64 v{vOXW}, v[{OP+2*c}:{OP+2*c+1}] offset:{c*128}")
    a("s_mov_b64 exec, -1")
    a("s_waitcnt lgkmcnt(0)")
    tick(a, 3)
    stamp2(a, 4, S_T, KVR, KVR+1)
    a("s_barrier")
    a(f"ds_read_b128 v[{OF_}:{OF_+3}], v{vLB} offset:{C_OX}\nds_read_b128 v[{OF_+4}:{OF_+7}], v{vLB} offset:{C_OX+1024}")
    a(f"""s_and_b32 s60, s{S_T}, 1
    s_lshl_b32 s60, s60, 19
    s_add_u32 s74, s{S_PARTW}, s60
    s_add_u32 s75, s74, 0x8000
    s_add_u32 s{S_PZ}, s{S_PARTR}, s60
    s_add_u32 s76, s{S_PZ}, 4096""")
    PR = ACC
    PK = KVR
    fq = []
    def fill(n):
        for _ in range(n):
            if fq: a(fq.pop(0))
    a("s_waitcnt lgkmcnt(1)")
    for c8 in range(8):
        a(f"v_smfmac_f32_16x16x64_bf16 v[{OA[c8]}:{OA[c8]+3}], v[{OF_}:{OF_+3}], v[{128+c8*8}:{128+c8*8+7}], v{vIDX}")
        if c8 == 0: a("s_waitcnt lgkmcnt(0)")
        if c8 == FSP:
            a(f"""s_mov_b64 exec, 0x101
            buffer_load_dword v{vFLG}, v{vPLD}, {WS}, s{S_FL} offen offset:512 sc1
            s_mov_b64 exec, -1""")
        fill(2)
        a(f"v_smfmac_f32_16x16x64_bf16 v[{OA[c8]}:{OA[c8]+3}], v[{OF_+4}:{OF_+7}], v[{192+c8*8}:{192+c8*8+7}], v{vIDX}")
        fill(3)
        if c8 >= 2 and not (c8 & 1) or c8 == 7:
            ps = [(c8 - 2) >> 1] if c8 < 7 else []
            for p in ps:
                for r in range(4):
                    fq += [f"v_permlane32_swap_b32 v{OA[2*p]+r}, v{OA[2*p+1]+r}", f"v_add_f32 v{PR+4*r+p}, v{OA[2*p]+r}, v{OA[2*p+1]+r}"]
                if p == 1: fq += [f"v_cvt_pk_f16_f32 v{PK+2*r}, v{PR+4*r}, v{PR+4*r+1}" for r in range(4)]
    fill(99)
    for r in range(4): a(f"v_permlane32_swap_b32 v{OA[6]+r}, v{OA[7]+r}")
    for r in range(4): a(f"v_add_f32 v{PR+4*r+3}, v{OA[6]+r}, v{OA[7]+r}")
    for r in range(4): a(f"v_cvt_pk_f16_f32 v{PK+2*r+1}, v{PR+4*r+2}, v{PR+4*r+3}")
    PR = PK
    mode_stores([f"buffer_store_dwordx4 v[{PR+4*rh}:{PR+4*rh+3}], v{vPST}, {WS}, s{74+rh} offen {{m}}" for rh in range(2)])
    tick(a, 4)
    RL = AF
    lg.clear()
    X = KVR + 12; Y = KVR + 12; SEL = KVR + 8; NG = AF + 8
    def red_loads(R):
        for t4, sr in enumerate((S_PZ, 76)):
            a(f"buffer_load_dwordx4 v[{R+4*t4}:{R+4*t4+3}], v{vPLD}, {WS}, s{sr} offen sc1")
    def red_done(R):
        a(f"v_mfma_f32_16x16x32_f16 v[{Y}:{Y+3}], v[{SEL}:{SEL+3}], v[{R}:{R+3}], 0")
        a(f"v_mfma_f32_16x16x32_f16 v[{Y}:{Y+3}], v[{SEL}:{SEL+3}], v[{R+4}:{R+7}], v[{Y}:{Y+3}]")
    a(f"ds_read_b128 v[{SEL}:{SEL+3}], v{vLB} offset:{C_SEL}")
    for k in range(6): wv_issue(ORDER[k])
    zero(ACC, 24)
    for k in range(4): a(f"v_mov_b32 v{NG+k}, -1")
    a(f"s_add_u32 s{S_PUBW}, s{S_PUBW}, {PTS}\ns_and_b32 s{S_PUBW}, s{S_PUBW}, {PRM}")
    for _ in range(PD1 // 16): a("s_nop 15")
    assert PG1 < 0
    pipe_poll("red", red_loads, AF, AF + 8, X, red_done, 23, PG1)
    a("s_mov_b64 exec, s[94:95]") if False else None
    for ro in (8, 4):
        for p in range(4): a(f"v_add_f32_dpp v{Y+p}, v{Y+p}, v{Y+p} row_ror:{ro} row_mask:0xf bank_mask:0xf")
    a(f"v_cvt_pk_bf16_f32 v{Y}, v{Y}, v{Y+1}\nv_cvt_pk_bf16_f32 v{Y+1}, v{Y+2}, v{Y+3}\ns_mov_b64 exec, s[94:95]")
    mode_stores([f"buffer_store_dwordx2 v[{Y}:{Y+1}], v{vPUBST}, {WS}, s{S_PUBW} offen {{m}}",
                 "s_mov_b64 exec, 0xf", f"buffer_store_dwordx4 v[{NG}:{NG+3}], v{vL16}, {WS}, s77 offen {{m}}", "s_mov_b64 exec, -1"] +
                [f"buffer_store_dwordx4 v[{NG}:{NG+3}], v{vPLD}, {WS}, s{sr} offen {{m}}" for sr in (S_PZ, 76)])
    tick(a, 5)
    a(f"""s_add_u32 s{S_T}, s{S_T}, 1
    s_add_u32 s{S_PUB}, s{S_PUB}, {PTS}
    s_add_u32 s77, s77, {PTS}
    s_and_b32 s{S_PUB}, s{S_PUB}, {PRM}
    s_and_b32 s77, s77, {PRM}
    s_add_u32 s{S_KV}, s{S_KV}, {128*4096}
    s_and_b32 s{S_KV}, s{S_KV}, {KVM}
    s_and_b32 s60, s{S_T}, 7
    s_lshl_b32 s60, s60, 18
    s_add_u32 s{S_ZV}, s71, s60
    s_add_u32 s{S_FL}, s{S_FL}, 512
    s_branch L_{P}_loop""")
    a.label(f"L_{P}_last")
    lg.q = lg_save; vq[:] = vq_save
    a(f"buffer_store_dwordx4 v[{F}:{F+3}], v{vL16}, {WS}, s{S_ZV} offen sc1")
    vstep(16)
    vfold()
    a("s_waitcnt vmcnt(0)")
    stamp(a, 2)
    tick_dump(a)
    a("s_endpgm")
```

```python
from dsl import Asm
NAME = "interleave_layers__memory_aug_recurrent_mem_tr__dense_activation_gelu__prompt"
FQKV=0x00000; FQB=0x10000; FKM=0x10000; FO=0x20000; FX1=0x30000; FH=0x4000; FX2=0x8000
PUB=0xE000000; PART=0x200000; X1=0x400000; X2=0x800000; X0=0xA00000; STAMP=0x80000; XST=0xC00000; XST1=0xD00000; HF=0x1000000; HFS=0x16000
KV=0x2000000; ZV=0x6000000; OF=0x8000000; XP=0xA000000
LDS_SLOT = 163824
TLIMIT = 1 << 26
WS="s[4:7]"; DBG="s[8:11]"; SW="s[12:15]"; SX="s[48:51]"; SO="s[52:55]"
S_T0=46; S_WAVE=47; S_SLOT=56; S_L=57; S_H=58; S_R=59
SEL_LO=44; SEL_HI=45
C1 = 0.08838834764831845 * 1.4426950408889634
import struct
def f2u(f): return struct.unpack("<I", struct.pack("<f", f))[0]

def srd(a, dst, plo, size, off=0):
    if off:
        a(f"s_add_u32 s{dst}, s{plo}, {off}\ns_addc_u32 s{dst+1}, s{plo+1}, 0")
    else:
        a(f"s_mov_b32 s{dst}, s{plo}\ns_mov_b32 s{dst+1}, s{plo+1}")
    a(f"s_mov_b32 s{dst+2}, {size}\ns_mov_b32 s{dst+3}, 0x00020000")

import os
SLP = int(os.environ.get('SLP', '1'))
ABORT = ['L_abort']
def timeout(a, code):
    a(f"""s_memtime s[60:61]
    s_waitcnt lgkmcnt(0)
    s_sub_u32 s60, s60, s{S_T0}
    s_mov_b32 s61, {code}
    s_cmp_gt_u32 s60, {TLIMIT}
    s_cbranch_scc1 {ABORT[0]}""")

def poll_flags(a, vaddr, soff, vtmp, mask, code, imm=0):
    L = a.newlabel("Lpoll"); L2 = a.newlabel("Lpoll")
    a(f"s_mov_b64 exec, {mask}\ns_branch {L2}")
    a.label(L)
    a(f"s_sleep {SLP}")
    a.label(L2)
    a(f"buffer_load_dword v{vtmp}, v{vaddr}, {WS}, {soff} offen offset:{imm} sc1")
    timeout(a, code)
    a(f"""s_waitcnt vmcnt(0)
    v_cmp_eq_u32 vcc, 0, v{vtmp}
    s_cbranch_vccnz {L}
    s_mov_b64 exec, -1""")

def set_flag(a, vaddr, soff, vone, imm=0):
    a(f"""s_waitcnt vmcnt(0)
    s_mov_b64 exec, 1
    buffer_store_dword v{vone}, v{vaddr}, {WS}, {soff} offen offset:{imm} sc1
    s_mov_b64 exec, -1""")

def wr(a, dest, vsrc_expr_fn):
    pass

def load_w_ntype(a, S, vaddr, pitch, rowfn, nu, destfn, tmp0, nbanks=3, ug=2, sink=None, sx=None):
    groups = [list(range(g, min(g + ug, nu))) for g in range(0, nu, ug)]
    scratch = tmp0 + nbanks * ug * 8
    def issue(gi):
        b = tmp0 + (gi % nbanks) * ug * 8
        for k, u in enumerate(groups[gi]):
            for i in range(8):
                off = rowfn(u, i) * pitch
                if sx is not None:
                    a(f"s_xor_b32 s60, s{sx}, {off}\nbuffer_load_dword v{b+k*8+i}, v{vaddr}, {S}, s60 offen")
                elif off < 4096:
                    a(f"buffer_load_dword v{b+k*8+i}, v{vaddr}, {S}, 0 offen offset:{off}")
                else:
                    a(f"s_mov_b32 s60, {off}\nbuffer_load_dword v{b+k*8+i}, v{vaddr}, {S}, s60 offen")
    for gi in range(min(nbanks - 1, len(groups))): issue(gi)
    for gi in range(len(groups)):
        if gi + nbanks - 1 < len(groups): issue(gi + nbanks - 1)
        later = sum(len(groups[x]) * 8 for x in range(gi + 1, min(gi + nbanks, len(groups))))
        a(f"s_waitcnt vmcnt({later})")
        b = tmp0 + (gi % nbanks) * ug * 8
        for k, u in enumerate(groups[gi]):
            for c in range(2):
                for j in range(4):
                    sel = SEL_LO if c == 0 else SEL_HI
                    s0 = b + k * 8 + 2 * j + 1; s1 = b + k * 8 + 2 * j
                    if sink is not None:
                        a(f"v_perm_b32 v{scratch+c*4+j}, v{s0}, v{s1}, s{sel}")
                    else:
                        kind, idx = destfn(c, u, j)
                        if kind == "v": a(f"v_perm_b32 v{idx}, v{s0}, v{s1}, s{sel}")
                        else:
                            a(f"v_perm_b32 v{scratch+c*4+j}, v{s0}, v{s1}, s{sel}")
                            a(f"v_accvgpr_write_b32 a{idx}, v{scratch+c*4+j}")
            if sink is not None: sink(u, scratch)

WNB = int(os.environ.get("WNB", "8"))
def load_w_multi(a, S, jobs, tmp0, nbanks=None, tail=None, ntail=0):
    nbanks = nbanks or WNB
    groups = [(j, u) for j in jobs for u in range(j["nu"])]
    scratch = tmp0 + nbanks * 8
    def issue(gi):
        j, u = groups[gi]; b = tmp0 + (gi % nbanks) * 8
        if u == 0 and j.get("pre"): j["pre"]()
        for i in range(8):
            off = j["rowfn"](u, i) * j["pitch"]
            if j.get("sx") is not None:
                a(f"s_xor_b32 s60, s{j['sx']}, {off}\nbuffer_load_dword v{b+i}, v{j['vaddr']}, {S}, s60 offen")
            elif off < 4096:
                a(f"buffer_load_dword v{b+i}, v{j['vaddr']}, {S}, 0 offen offset:{off}")
            else:
                a(f"s_mov_b32 s60, {off}\nbuffer_load_dword v{b+i}, v{j['vaddr']}, {S}, s60 offen")
    for gi in range(nbanks - 1): issue(gi)
    extra = 0
    for gi in range(len(groups)):
        if gi + nbanks - 1 < len(groups): issue(gi + nbanks - 1)
        elif tail and gi + nbanks - 1 - len(groups) < ntail:
            tail(gi + nbanks - 1 - len(groups)); extra += 8
        later = 8 * (min(gi + nbanks, len(groups)) - gi - 1) + extra
        a(f"s_waitcnt vmcnt({later})")
        j, u = groups[gi]; b = tmp0 + (gi % nbanks) * 8
        for c in range(2):
            for q in range(4):
                sel = SEL_LO if c == 0 else SEL_HI
                s0 = b + 2 * q + 1; s1 = b + 2 * q
                if j.get("sink") is not None:
                    a(f"v_perm_b32 v{scratch+c*4+q}, v{s0}, v{s1}, s{sel}")
                else:
                    kind, idx = j["dest"](c, u, q)
                    if kind == "v": a(f"v_perm_b32 v{idx}, v{s0}, v{s1}, s{sel}")
                    else:
                        a(f"v_perm_b32 v{scratch+c*4+q}, v{s0}, v{s1}, s{sel}")
                        a(f"v_accvgpr_write_b32 a{idx}, v{scratch+c*4+q}")
        if j.get("sink") is not None: j["sink"](u, scratch)
        if u == j["nu"] - 1 and j.get("post"): j["post"]()

def load_w_ktype(a, S, vaddr, pitch, rowfn, ulist, destfn, tmp0, nbanks=2):
    scratch = tmp0 + nbanks * 32
    real = [u for u in ulist if rowfn(u, 0) is not None]
    def issue(gi):
        b = tmp0 + (gi % nbanks) * 32
        u = real[gi]
        for i in range(8):
            off = rowfn(u, i) * pitch
            if off < 4096:
                a(f"buffer_load_dwordx4 v[{b+i*4}:{b+i*4+3}], v{vaddr}, {S}, 0 offen offset:{off}")
            else:
                a(f"s_mov_b32 s60, {off}\nbuffer_load_dwordx4 v[{b+i*4}:{b+i*4+3}], v{vaddr}, {S}, s60 offen")
    for gi in range(min(nbanks - 1, len(real))): issue(gi)
    for gi in range(len(real)):
        if gi + nbanks - 1 < len(real): issue(gi + nbanks - 1)
        later = 8 * (min(gi + nbanks, len(real)) - gi - 1)
        a(f"s_waitcnt vmcnt({later})")
        b = tmp0 + (gi % nbanks) * 32
        u = real[gi]
        n = 0
        for c in range(8):
            for j in range(4):
                sel = SEL_LO if (c & 1) == 0 else SEL_HI
                s0 = b + (2 * j + 1) * 4 + (c >> 1); s1 = b + (2 * j) * 4 + (c >> 1)
                kind, idx = destfn(c, u, j)
                if kind == "v": a(f"v_perm_b32 v{idx}, v{s0}, v{s1}, s{sel}")
                else:
                    t = scratch + (n % 8); n += 1
                    a(f"v_perm_b32 v{t}, v{s0}, v{s1}, s{sel}")
                    a(f"v_accvgpr_write_b32 a{idx}, v{t}")

def swapadd(a, width, x, y, dst, op="v_add_f32"):
    a(f"v_permlane{width}_swap_b32 v{x}, v{y}")
    a(f"{op} v{dst}, v{x}, v{y}")

def softmax12(a, T, m, t, s_c1, Ptok, Pm):
    a(f"v_max3_f32 v{m}, v{T}, v{T+1}, v{T+2}")
    a(f"v_max3_f32 v{t}, v{T+3}, v{T+4}, v{T+5}")
    a(f"v_max3_f32 v{m}, v{m}, v{T+6}, v{T+7}")
    a(f"v_max3_f32 v{t}, v{t}, v{T+8}, v{T+9}")
    a(f"v_max3_f32 v{m}, v{m}, v{T+10}, v{T+11}")
    a(f"v_max_f32 v{m}, v{m}, v{t}")
    a(f"v_mov_b32 v{t}, v{m}")
    a(f"v_permlane16_swap_b32 v{m}, v{t}")
    a(f"v_max_f32 v{m}, v{m}, v{t}")
    a(f"v_mov_b32 v{t}, v{m}")
    a(f"v_permlane32_swap_b32 v{m}, v{t}")
    a(f"v_max_f32 v{m}, v{m}, v{t}")
    a(f"v_mul_f32 v{m}, s{s_c1}, v{m}")
    for i in range(12):
        a(f"v_fma_f32 v{T+i}, v{T+i}, s{s_c1}, -v{m}")
    for i in range(12):
        a(f"v_exp_f32 v{T+i}, v{T+i}")
    a(f"v_cvt_pk_bf16_f32 v{Pm}, v{T}, v{T+1}")
    a(f"v_cvt_pk_bf16_f32 v{Pm+1}, v{T+2}, v{T+3}")
    for i in range(4):
        a(f"v_cvt_pk_bf16_f32 v{Ptok+i}, v{T+4+2*i}, v{T+5+2*i}")

def part_stats(a, y0, y1, t):
    for k, y in enumerate((y0, y1)):
        s_ = t + 2 * k; q_ = t + 4 + 2 * k
        a(f"v_pk_add_f32 v[{s_}:{s_+1}], v[{y}:{y+1}], v[{y+2}:{y+3}]")
        a(f"v_pk_mul_f32 v[{q_}:{q_+1}], v[{y}:{y+1}], v[{y}:{y+1}]")
        a(f"v_pk_add_f32 v[{s_}:{s_+1}], v[{s_}:{s_+1}], v[{y+4}:{y+5}]")
        a(f"v_pk_fma_f32 v[{q_}:{q_+1}], v[{y+2}:{y+3}], v[{y+2}:{y+3}], v[{q_}:{q_+1}]")
        a(f"v_pk_add_f32 v[{s_}:{s_+1}], v[{s_}:{s_+1}], v[{y+6}:{y+7}]")
        a(f"v_pk_fma_f32 v[{q_}:{q_+1}], v[{y+4}:{y+5}], v[{y+4}:{y+5}], v[{q_}:{q_+1}]")
        a(f"v_pk_fma_f32 v[{q_}:{q_+1}], v[{y+6}:{y+7}], v[{y+6}:{y+7}], v[{q_}:{q_+1}]")
    for k in range(4):
        a(f"v_add_f32 v{t+2*k}, v{t+2*k}, v{t+2*k+1}")
    swapadd(a, 16, t, t + 2, t)
    swapadd(a, 16, t + 4, t + 6, t + 4)
    swapadd(a, 32, t, t + 4, t)

def prologue(a):
    a(f"""s_load_dwordx16 s[16:31], s[0:1], 0
    s_load_dwordx8 s[32:39], s[0:1], 64
    s_load_dwordx4 s[40:43], s[0:1], 96
    s_load_dwordx2 s[62:63], s[0:1], 112
    s_memtime s[60:61]
    s_getreg_b32 s64, hwreg(HW_REG_XCC_ID)
    v_lshrrev_b32 v1, 6, v0
    v_and_b32 v0, 63, v0
    s_waitcnt lgkmcnt(0)
    s_mov_b32 s{S_T0}, s60
    v_readfirstlane_b32 s{S_WAVE}, v1
    s_and_b32 s64, s64, 7""")
    srd(a, 4, 62, 0x10000000)
    srd(a, 8, 42, 256)
    a(f"""s_mov_b32 s{SEL_LO}, 0x05040100
    s_mov_b32 s{SEL_HI}, 0x07060302
    s_cmp_lg_u32 s{S_WAVE}, 0
    s_cbranch_scc1 L_gotslot
    s_mov_b64 exec, 1
    s_lshl_b32 s66, s64, 2
    v_mov_b32 v1, 1
    v_mov_b32 v2, s66
    buffer_atomic_add v1, v2, {DBG}, 0 offen sc0 sc1
    s_waitcnt vmcnt(0)
    v_readfirstlane_b32 s65, v1
    s_lshl_b32 s66, s64, 5
    s_add_u32 s{S_SLOT}, s66, s65
    s_cmp_lt_u32 s65, 32
    s_cbranch_scc1 L_pubslot
    s_mov_b32 s66, 0""")
    a.label("L_ovf")
    a(f"""s_lshl_b32 s65, s66, 2
    v_mov_b32 v2, s65
    buffer_load_dword v1, v2, {DBG}, 0 offen sc1
    s_waitcnt vmcnt(0)
    v_readfirstlane_b32 s65, v1
    s_cmp_ge_u32 s65, 32
    s_cbranch_scc1 L_ovf_next
    v_mov_b32 v1, 1
    buffer_atomic_add v1, v2, {DBG}, 0 offen sc0 sc1
    s_waitcnt vmcnt(0)
    v_readfirstlane_b32 s65, v1
    s_lshl_b32 s{S_SLOT}, s66, 5
    s_add_u32 s{S_SLOT}, s{S_SLOT}, s65
    s_cmp_lt_u32 s65, 32
    s_cbranch_scc1 L_pubslot""")
    a.label("L_ovf_next")
    a(f"""s_add_u32 s66, s66, 1
    s_cmp_lt_u32 s66, 8
    s_cbranch_scc1 L_ovf
    s_mov_b32 s{S_SLOT}, -1""")
    a.label("L_pubslot")
    a(f"""v_mov_b32 v1, s{S_SLOT}
    v_mov_b32 v2, {LDS_SLOT}
    ds_write_b32 v2, v1
    s_waitcnt lgkmcnt(0)
    s_mov_b64 exec, -1""")
    a.label("L_gotslot")
    a(f"""s_barrier
    v_mov_b32 v2, {LDS_SLOT}
    ds_read_b32 v1, v2
    s_waitcnt lgkmcnt(0)
    v_readfirstlane_b32 s{S_SLOT}, v1
    s_cmp_lt_i32 s{S_SLOT}, 0
    s_cbranch_scc1 L_exit""")
    a(f"""s_lshl_b32 s60, s{S_SLOT}, 10
    s_lshl_b32 s61, s{S_WAVE}, 8
    s_add_u32 s60, s60, s61
    v_lshlrev_b32 v2, 2, v0
    v_mov_b32 v1, 0
    buffer_store_dword v1, v2, {WS}, s60 offen sc1""")
    srd(a, 48, 16, 2048 * 1024)
    a(f"s_mov_b32 s67, s{S_SLOT}\ns_cmp_lt_u32 s67, 32\ns_cbranch_scc1 L_noprep")
    a.label("L_prep")
    a(f"""v_and_b32 v3, 15, v0
    v_lshrrev_b32 v4, 4, v0
    v_lshlrev_b32 v3, 10, v3
    v_lshl_add_u32 v3, v4, 6, v3
    v_add_u32 v4, 0x4000, v3
    s_lshr_b32 s60, s67, 2
    s_lshl_b32 s60, s60, 15
    s_and_b32 s61, s67, 3
    s_lshl_b32 s65, s61, 8
    s_lshl_b32 s66, s{S_WAVE}, 4
    s_add_u32 s65, s65, s66
    s_add_u32 s65, s65, s60
    buffer_load_dwordx4 v[8:11], v3, {SX}, s65 offen
    buffer_load_dwordx4 v[12:15], v4, {SX}, s65 offen
    s_lshl_b32 s61, s61, 13
    s_lshl_b32 s66, s{S_WAVE}, 11
    s_add_u32 s60, s60, s61
    s_add_u32 s60, s60, s66
    s_add_u32 s60, s60, {X0}
    v_lshlrev_b32 v2, 4, v0
    s_waitcnt vmcnt(0)
    buffer_store_dwordx4 v[8:11], v2, {WS}, s60 offen sc1
    buffer_store_dwordx4 v[12:15], v2, {WS}, s60 offen offset:1024 sc1""")
    for j in range(8):
        a(f"v_lshlrev_b32 v{16+2*j}, 16, v{8+j}\nv_and_b32 v{17+2*j}, 0xffff0000, v{8+j}")
    part_stats(a, 16, 24, 32)
    a(f"""s_lshl_b32 s60, s67, 10
    s_lshl_b32 s61, s{S_WAVE}, 2
    s_add_u32 s60, s60, s61
    s_add_u32 s60, s60, {XST}
    buffer_store_dword v32, v2, {WS}, s60 offen sc1""")
    a("s_sub_u32 s67, s67, 32\ns_cmp_lt_u32 s67, 32\ns_cbranch_scc1 L_prep")
    a.label("L_noprep")

def stamp(a, k, vt=126, va=127):
    import os
    if "stamp" not in os.environ.get("GENOPT", ""): return
    L = a.newlabel("Lst")
    a(f"""s_cmp_lg_u32 s{S_WAVE}, 0
    s_cbranch_scc1 {L}
    s_memrealtime s[60:61]
    s_waitcnt lgkmcnt(0)
    s_lshl_b32 s61, s{S_SLOT}, 6
    s_add_u32 s61, s61, {STAMP + 4*k}
    s_mov_b64 exec, 1
    v_mov_b32 v{vt}, s60
    v_mov_b32 v{va}, 0
    buffer_store_dword v{vt}, v{va}, {WS}, s61 offen sc1
    s_mov_b64 exec, -1""")
    a.label(L)

STS = [int(x) for x in os.environ.get("STS", "0,20").split(",")]
TRK = dict(x.split(":") for x in os.environ.get("TRK", "C:3,H:4,O:3,F:3,G:4").split(","))
def stamp2(a, k, sreg, vt=126, va=127):
    if "trace" in os.environ.get("GENOPT", ""):
        if int(TRK[ABORT[0][-1]]) != k: return
        L = a.newlabel("Ltr")
        a.flush()
        a(f"""s_cmp_lg_u32 s{S_WAVE}, 0
        s_cbranch_scc1 {L}
        s_memrealtime s[60:61]
        s_waitcnt lgkmcnt(0)
        s_lshl_b32 s61, s{S_SLOT}, 8
        s_add_u32 s61, s61, {STAMP + 0x20000}
        s_mov_b64 exec, 1
        v_mov_b32 v{vt}, s60
        v_mov_b32 v{va}, s{sreg}
        v_lshlrev_b32 v{va}, 2, v{va}
        buffer_store_dword v{vt}, v{va}, {WS}, s61 offen sc1
        s_mov_b64 exec, -1""")
        a.label(L)
        return
    for j, v in enumerate(STS): stamp_if(a, k + 4 * j, sreg, v, vt, va)
def stamp_if(a, k, sreg, val, vt=126, va=127):
    import os
    if "stamp" not in os.environ.get("GENOPT", ""): return
    L = a.newlabel("Lsi")
    a(f"s_cmp_lg_u32 s{sreg}, {val}\ns_cbranch_scc1 {L}")
    a(f"v_accvgpr_write_b32 a255, v{vt}") if False else None
    stamp(a, k, vt, va)
    a.label(L)

def prof_on():
    import os
    return "prof" in os.environ.get("GENOPT", "")
def tick_init(a):
    if not prof_on(): return
    for k in range(12): a(f"s_mov_b32 s{80+k}, 0")
    a("s_memtime s[60:61]\ns_waitcnt lgkmcnt(0)\ns_mov_b32 s79, s60")
def tick(a, k):
    if not prof_on(): return
    a(f"""s_memtime s[60:61]
    s_waitcnt lgkmcnt(0)
    s_sub_u32 s61, s60, s79
    s_mov_b32 s79, s60
    s_add_u32 s{80+k}, s{80+k}, s61""")
def tick_dump(a, vt=126, va=127):
    if not prof_on(): return
    a(f"""s_lshl_b32 s61, s{S_SLOT}, 8
    s_lshl_b32 s60, s{S_WAVE}, 6
    s_add_u32 s61, s61, s60
    s_add_u32 s61, s61, {STAMP + 0x10000}
    s_mov_b64 exec, 1
    v_mov_b32 v{va}, 0""")
    for k in range(12):
        a(f"v_mov_b32 v{vt}, s{80+k}\nbuffer_store_dword v{vt}, v{va}, {WS}, s61 offen offset:{4*k} sc1\ns_waitcnt vmcnt(0)")
    a("s_mov_b64 exec, -1")

def arrive(a, v1=1, v2=2, wait=True):
    L = a.newlabel("Larr")
    if wait: a("s_waitcnt vmcnt(0)")
    a(f"""s_barrier
    s_cmp_lg_u32 s{S_WAVE}, 0
    s_cbranch_scc1 {L}
    s_getreg_b32 s60, hwreg(HW_REG_XCC_ID)
    s_and_b32 s60, s60, 7
    s_lshr_b32 s61, s{S_SLOT}, 5
    s_cmp_eq_u32 s60, s61
    s_cselect_b32 s60, 1, 0x10001
    s_mov_b64 exec, 1
    v_mov_b32 v{v1}, s60
    v_mov_b32 v{v2}, 136
    buffer_atomic_add v{v1}, v{v2}, {DBG}, 0 offen sc1
    s_mov_b64 exec, -1""")
    a.label(L)

DLY = [int(x) for x in os.environ.get("DLY", "0,0,0,0").split(",")]
def late_start(a, n1, n0=0):
    L = a.newlabel("Lls")
    for _ in range(n0): a("s_sleep 127")
    if n1 > n0:
        a(f"s_cmp_eq_u32 s{S_L}, 0\ns_cbranch_scc1 {L}")
        for _ in range(n1 - n0): a("s_sleep 127")
        a.label(L)

def wait_all(a, vt=1, va=2, s_fast=None):
    L = a.newlabel("Lgb")
    a(f"s_mov_b64 exec, 1\nv_mov_b32 v{va}, 136")
    a.label(L)
    a(f"buffer_load_dword v{vt}, v{va}, {DBG}, 0 offen sc1")
    timeout(a, 2)
    a(f"""s_waitcnt vmcnt(0)
    v_readfirstlane_b32 s60, v{vt}
    s_and_b32 s61, s60, 0xffff
    s_cmp_lt_u32 s61, 256
    s_cbranch_scc1 {L}
    s_mov_b64 exec, -1""")
    if s_fast is not None:
        a(f"s_cmp_lt_u32 s60, 0x10000\ns_cselect_b32 s{s_fast}, 1, 0")
        if "slow" in os.environ.get("GENOPT", ""): a(f"s_mov_b32 s{s_fast}, 0")

def epilogue(a, lab="L_abort", ex=True):
    a.label(lab)
    a(f"""s_mov_b64 exec, 1
    s_lshl_b32 s60, s{S_SLOT}, 8
    s_or_b32 s60, s60, s61
    s_lshl_b32 s61, s{S_WAVE}, 16
    s_or_b32 s60, s60, s61
    s_or_b32 s60, s60, 0x40000000
    v_mov_b32 v1, s60
    v_mov_b32 v2, 160
    buffer_store_dword v1, v2, {DBG}, 0 offen sc1
    s_waitcnt vmcnt(0)""")
    if ex: a.label("L_exit")
    a("s_endpgm")

HEADER = f"""; @launch grid=(256,1,1) block=(256,1,1) lds=163840
.amdgcn_target "amdgcn-amd-amdhsa--gfx950"
.text
.globl {NAME}_kernel
.p2align 8
.type {NAME}_kernel,@function
{NAME}_kernel:
"""
FOOTER = f""".section .rodata,"a"
.p2align 6
.amdhsa_kernel {NAME}_kernel
  .amdhsa_next_free_vgpr 512
  .amdhsa_next_free_sgpr 102
  .amdhsa_accum_offset 256
  .amdhsa_group_segment_fixed_size 0
  .amdhsa_kernarg_size 120
  .amdhsa_user_sgpr_count 2
  .amdhsa_user_sgpr_kernarg_segment_ptr 1
  .amdhsa_system_sgpr_workgroup_id_x 1
.end_amdhsa_kernel
"""

class Gate:
    def __init__(s, a, part): s.a = a; s.part = part; s.on = (part == "pre")
    def split(s): s.on = (s.part == "main")
    def __call__(s, t):
        if s.on: s.a(t)
    def label(s, n, pad=True):
        if s.on: s.a.label(n, pad)
    def flush(s):
        if s.on: s.a.flush()
    def newlabel(s, b="L"): return s.a.newlabel(b)

class Q:
    def __init__(s, a, name, mx): s.a = a; s.n = name; s.mx = mx; s.q = []
    def issue(s, tag): s.q.append(tag)
    def wait(s, tag):
        if tag not in s.q: return
        i = s.q.index(tag); n = len(s.q) - 1 - i
        s.a(f"s_waitcnt {s.n}({min(n, s.mx)})")
        s.q = s.q[i + 1:] if n <= s.mx else s.q[len(s.q) - s.mx:]
    def clear(s): s.q = []

def dma_list(s_src, s_lds, chunks, s_w, sx=None):
    base = 0; out = []
    for c, pw in enumerate(chunks):
        for k in range(pw):
            t = ""
            if k % 4 == 0:
                t = f"""s_add_u32 s100, s{s_lds}, s{s_w[pw]}
                s_add_u32 m0, s100, {base + k*1024}
                s_add_u32 s100, s{s_src}, s{s_w[pw]}
                s_add_u32 s100, s100, {base + k*1024}
                """
                if sx is not None: t += f"s_xor_b32 s100, s100, s{sx}\n"
            out.append((c, t + f"buffer_load_dwordx4 v1, {WS}, s100 offen offset:{(k%4)*1024} sc1 lds"))
        base += 4 * pw * 1024
    return out

def dma_list2(s_src, s_lds, chunks, s_w):
    fb = 0; out = []
    for c, pw in enumerate(chunks):
        for k in range(pw):
            if k == 0:
                t = f"""s_add_u32 s100, s{s_lds}, s{s_w[pw]}
                s_add_u32 m0, s100, {fb*1024}
                s_lshl1_add_u32 s100, s{s_w[pw]}, s{s_src}
                s_add_u32 s100, s100, {fb*2048}
                """
            else: t = "s_add_u32 m0, m0, 1024\ns_add_u32 s100, s100, 2048\n"
            out.append((c, t + f"buffer_load_dwordx4 v1, {WS}, s100 offen sc1 lds"))
        fb += 4 * pw
    return out

def gemm_lds(a, nfr, chunks, vrd, XW, nwin, mf, dma, vm, lead, every, hook=None, lg=None, pre=None, alt=False, fmap=None):
    lg = lg or Q(a, "lgkmcnt", 15)
    dma = list(dma); cnt = {}
    def issue1():
        c, t = dma.pop(0)
        a(t); cnt[c] = cnt.get(c, 0) + 1
        vm.issue(("d", c, cnt[c]))
    starts = {}; s0 = 0
    for c, pw in enumerate(chunks):
        starts[s0] = c; s0 += 4 * pw
    for _ in range(min(lead, len(dma))): issue1()
    if pre: pre()
    def rd(f):
        if f in starts:
            c = starts[f]
            while dma and dma[0][0] <= c: issue1()
            ct = "ctick" in os.environ.get("GENOPT", "")
            if ct: tick(a, 9)
            vm.wait(("d", c, chunks[c]))
            if ct: tick(a, 3 + min(c, 4))
            a("s_barrier")
            if ct: tick(a, 8)
            if hook: hook(("chunk", c), 0)
        r = XW + (f % nwin) * 4
        fr = fmap(f) if fmap else f
        off = (fr & ~1) * 1024 if alt else fr * 1024
        vb = (vrd + (fr & 1)) if alt else (vrd if off < 65536 else vrd + 1)
        a(f"ds_read_b128 v[{r}:{r+3}], v{vb} offset:{off % 65536}"); lg.issue(("x", f))
    for f in range(nwin): rd(f)
    n = 0
    for f in range(nfr):
        lg.wait(("x", f))
        for i, m in enumerate(mf(f, XW + (f % nwin) * 4)):
            a(m); n += 1
            if dma and n % every == 0: issue1()
            if hook: hook(f, i)
        if f + nwin < nfr: rd(f + nwin)

def flush_pend(a, s_pend, vone):
    L = a.newlabel("Lnp")
    a(f"""s_cmp_eq_u32 s{s_pend}, 0
    s_cbranch_scc1 {L}
    s_mov_b64 s[98:99], exec
    s_mov_b64 exec, 1
""")
    mode_stores(a, [f"buffer_store_dword v{vone}, off, {WS}, s{s_pend} {{m}}"])
    a(f"""s_mov_b64 exec, s[98:99]
    s_mov_b32 s{s_pend}, 0""")
    a.label(L, pad=False)

def poll_pend(a, vaddr, soff, vtmp, mask, code, s_pend, vone, slp=1):
    L = a.newlabel("Lpoll"); L2 = a.newlabel("Lpoll")
    a(f"s_mov_b64 exec, {mask}\ns_branch {L2}")
    a.label(L)
    a(f"s_sleep {SLP}")
    a.label(L2)
    a(f"buffer_load_dword v{vtmp}, v{vaddr}, {WS}, {soff} offen sc1")
    timeout(a, code)
    a("s_waitcnt vmcnt(0)")
    flush_pend(a, s_pend, vone)
    a(f"""v_cmp_eq_u32 vcc, 0, v{vtmp}
    s_cbranch_vccnz {L}
    s_mov_b64 exec, -1""")

def part_stats2(a, y0, y1, t):
    for k, y in enumerate((y0, y1)):
        a(f"v_add_f32 v{t+k}, v{y[0]}, v{y[1]}\nv_mul_f32 v{t+2+k}, v{y[0]}, v{y[0]}")
    for i in range(1, 8):
        for k, y in enumerate((y0, y1)):
            if i >= 2: a(f"v_add_f32 v{t+k}, v{t+k}, v{y[i]}")
            a(f"v_fmac_f32 v{t+2+k}, v{y[i]}, v{y[i]}")
    swapadd(a, 16, t, t + 1, t)
    swapadd(a, 16, t + 2, t + 3, t + 2)
    swapadd(a, 32, t, t + 2, t)

FASTREG = [None]
OEV = int(os.environ.get("OEV", "2"))
def mode_stores(a, stores):
    if FASTREG[0] is None:
        for s in stores: a(s.format(m="sc1"))
        return
    L1 = a.newlabel("Lslow"); L2 = a.newlabel("Ljoin")
    a(f"s_cmp_eq_u32 s{FASTREG[0]}, 0\ns_cbranch_scc1 {L1}")
    for s in stores: a(s.format(m=""))
    a(f"s_branch {L2}")
    a.label(L1, pad=False)
    for s in stores: a(s.format(m="sc1"))
    a.label(L2, pad=False)

KVRING = int(os.environ.get("KVRING", "1")); OFAL = int(os.environ.get("OFAL", "1"))
KVM = "0xfe3fffff" if KVRING else "0xffffffff"
PW = int(os.environ.get("PW", "1")); PWD = int(os.environ.get("PWQ", "12"))
PWI = int(os.environ.get("PWI", "0")); PWLEAD = int(os.environ.get("PWLEAD", "2"))
PWS = int(os.environ.get("PWS", "128")); PWL = int(os.environ.get("PWL", "6"))
def prewarm(a, grp, v_a=32, v_d=33):
    M = 1 << 20
    of = [OF + k * M for k in range(16)]
    hf = [HF + k * M for k in range(11)]
    kv = [KV + k * M for k in range(4)] + [KV + 32 * M + k * M for k in range(4)]
    if grp == "H":
        blocks = [of[0], X1, XST1, hf[0], X2, XST] + kv[2:4] + of[1:3] + [hf[1]] + of[3:8]
        if PWI: blocks = kv[2:4]
        a(f"s_lshl_b32 s61, s{S_H}, 1\ns_add_u32 s61, s61, s{S_R}"); nw = 256
    else:
        if grp == "C": blocks = kv[4:8] + [hf[2], hf[3], X1 + M, X2 + M, hf[4]]
        else: blocks = [X1 + 2 * M, hf[5], hf[6], ("o", 0)] + of[8:12] + [hf[7], hf[8]] + of[12:16] + [hf[9], hf[10], X1 + 3 * M, ("o", M)]
        if PWI: blocks = kv[4:8] if grp == "C" else [("o", 0), ("o", M)]
        a(f"s_and_b32 s61, s{S_SLOT}, 31"); nw = 128
    px = os.environ.get("PWX", "of")
    if "of" in px: blocks = [b for b in blocks if b not in of]
    if "kv" in px: blocks = [b for b in blocks if b not in kv]
    if "bal" in px:
        blocks = {"H": [X1, XST1, hf[0], X2, XST, hf[1]] + kv[2:4] + [hf[2], hf[3], X1 + M, X2 + M, hf[4], hf[5]], "C": kv[4:8] + [X1 + 2 * M, hf[6]],
                  "L": [("o", 0)] + hf[7:11] + [X1 + 3 * M, ("o", M)]}[grp]
    if grp == "L": srd(a, 52, 40, 2048 * 1024)
    cov = 64 * PWS
    a(f"""s_lshl_b32 s61, s61, 2
    s_add_u32 s61, s61, s{S_WAVE}
    s_mul_i32 s60, s61, {cov}
    v_mul_u32_u24 v{v_a}, {PWS}, v0
    v_add_u32 v{v_a}, s60, v{v_a}""")
    for _ in range(PWL): a("s_sleep 64")
    step = nw * cov
    lst = []
    if step <= M:
        for b in blocks:
            r = WS
            if isinstance(b, tuple): r = SO; b = b[1]
            lst += [(r, b + o) for o in range(0, M, step)]
    else:
        assert step == 2 * M and len(blocks) % 2 == 0
        a(f"v_and_b32 v{v_a}, {hex(M - 1)}, v{v_a}\ns_cmp_ge_u32 s61, {nw // 2}")
        for k in range(0, len(blocks), 2):
            a(f"s_mov_b32 s60, {hex(blocks[k])}\ns_cselect_b32 s60, {hex(blocks[k + 1])}, s60\nbuffer_load_dword v{v_d}, v{v_a}, {WS}, s60 offen sc1\ns_waitcnt vmcnt({PWD})")
    for r, b in lst:
        a(f"s_mov_b32 s60, {hex(b)}\nbuffer_load_dword v{v_d}, v{v_a}, {r}, s60 offen sc1\ns_waitcnt vmcnt({PWD})")
    a("s_waitcnt vmcnt(0)")

def pw_setup(a, s_a, s_s, v_a):
    jobs = [(64, OF, 2 * 262144), (22, HF, 2 * HFS), (22, HF + 64 * HFS, 2 * HFS), (8, X1, 65536), (8, X1 + 64 * 32768, 65536),
            (8, X2, 65536), (2, XST1, 16384), (2, XST1 + 64 * 8192, 16384), (1, XST + 3 * 64 * 4096, 8192)]
    a(f"""s_lshl_b32 s{s_a}, s{S_H}, 1
    s_add_u32 s{s_a}, s{s_a}, s{S_R}
    s_lshl_b32 s60, s{S_WAVE}, 6
    s_add_u32 s64, s{s_a}, s60
    s_mov_b32 s{s_a}, 0
    s_mov_b32 s{s_s}, 0
    v_lshlrev_b32 v{v_a}, 7, v0""")
    st = 0
    for n, b, sd in jobs:
        a(f"""s_sub_u32 s60, s64, {st}
        s_lshl_b32 s61, s60, 13
        s_add_u32 s61, s61, {hex(b + (PWLEAD - 2) * sd)}
        s_cmp_lt_u32 s60, {n}
        s_cselect_b32 s{s_a}, s61, s{s_a}
        s_cselect_b32 s{s_s}, {hex(sd)}, s{s_s}""")
        st += n
    assert st <= 256
def pw_step(a, s_a, s_s, v_a, v_d, s_j):
    L = a.newlabel("Lpw")
    a(f"""s_cmp_eq_u32 s{s_s}, 0
    s_cbranch_scc1 {L}
    s_cmp_ge_u32 s{s_j}, {34 - PWLEAD}
    s_cbranch_scc1 {L}
    buffer_load_dword v{v_d}, v{v_a}, {WS}, s{s_a} offen sc1
    s_add_u32 s{s_a}, s{s_a}, s{s_s}""")
    a.label(L, pad=False)
FPF = int(os.environ.get("FPF", "3"))
```

```python
from gen_common import *
HFL = int(os.environ.get('HFL', '8')); HQF = int(os.environ.get('HQF', '28'))
NEG = f2u(-1e30)
H_CS = 49152
H_MSK = 65536
H_ST = 77824

def xmap_row(u, i): return 128 * (u >> 2) + 8 * (u & 3) + i

def stats_finish(a, sx0, t, vwr, n):
    a(f"""v_mov_b32 v{t}, v{sx0}
    v_permlane32_swap_b32 v{sx0}, v{t}
    v_mul_f32 v{sx0}, {hex(f2u(1.0/n))}, v{sx0}
    v_mul_f32 v{t}, {hex(f2u(1.0/n))}, v{t}
    v_fma_f32 v{t}, -v{sx0}, v{sx0}, v{t}
    v_max_f32 v{t}, 0, v{t}
    v_add_f32 v{t}, {hex(f2u(1e-5))}, v{t}
    v_rsq_f32 v{t}, v{t}
    v_mul_f32 v{sx0}, -v{sx0}, v{t}
    ds_write_b32 v{vwr}, v{t}
    ds_write_b32 v{vwr}, v{sx0} offset:128""")

def gemm_xloop(a, XW, mf, s_seg_off, s_st_off, ST, sx, vwr, nwin=8):
    def ld(f):
        u, tt = f >> 1, f & 1
        r = XW + (f % nwin) * 4
        if tt == 0: a(f"s_add_u32 s61, s{s_seg_off}, {u*2048}")
        a(f"buffer_load_dwordx4 v[{r}:{r+3}], v1, {WS}, s61 offen offset:{tt*1024} sc1")
    for k in range(16):
        a(f"buffer_load_dword v{ST+k}, v6, {WS}, s{s_st_off} offen offset:{k*256} sc1")
    for f in range(nwin): ld(f)
    def fill():
        for k in range(4): yield f"v_pk_add_f32 v[{ST+2*k}:{ST+2*k+1}], v[{ST+2*k}:{ST+2*k+1}], v[{ST+8+2*k}:{ST+9+2*k}]"
        for k in range(2): yield f"v_pk_add_f32 v[{ST+2*k}:{ST+2*k+1}], v[{ST+2*k}:{ST+2*k+1}], v[{ST+4+2*k}:{ST+5+2*k}]"
        yield f"v_pk_add_f32 v[{ST}:{ST+1}], v[{ST}:{ST+1}], v[{ST+2}:{ST+3}]"
        yield f"v_add_f32 v{sx}, v{ST}, v{ST+1}"
    fl = list(fill())
    for f in range(32):
        u, tt = f >> 1, f & 1
        r = XW + (f % nwin) * 4
        a(f"s_waitcnt vmcnt({min(nwin-1, 31-f)})")
        for m in mf(u, tt, r, u == 0):
            a(m)
            if fl: a(fl.pop(0))
        if f == 2: stats_finish(a, sx, sx + 1, vwr, 512)
        if f + nwin < 32: ld(f + nwin)

XCH = [2, 2, 4]
def x_issue(a, s_seg, s_st, s_lds, swd, ST, wd, vst, vm=None):
    cnt = {}
    for c, t in dma_list(s_seg, s_lds, XCH, swd):
        a(t); cnt[c] = cnt.get(c, 0) + 1
        if vm: vm.issue(("d", c, cnt[c]))
    for k in range(4):
        a(f"buffer_load_dwordx4 v[{ST[4*k]}:{ST[4*k]+3}], v1, {WS}, s{s_st} offen offset:{k*1024} sc1")
        if vm: vm.issue(("st", k))

def gemm_x(a, vm, vrd, XW, mf, ST, wd, sx, vwr, xhook=None):
    regs = [r + j for r in ST for j in range(wd)]
    fl = []
    while len(regs) > 1:
        nx = []
        for i in range(0, len(regs), 2):
            d = sx if len(regs) == 2 else regs[i]
            fl.append(f"v_add_f32 v{d}, v{regs[i]}, v{regs[i+1]}"); nx.append(d)
        regs = nx
    st = {"on": False}
    def hook(f, i):
        if xhook: xhook(f, i)
        if f == 16 and i == 0:
            vm.wait(("st", 3)); st["on"] = True
        if st["on"] and fl: a(fl.pop(0))
        if f == 24 and i == 0:
            assert not fl
            stats_finish(a, sx, sx + 1, vwr, 512)
    gemm_lds(a, 32, XCH, vrd, XW, 4, mf, [], vm, 0, 1, hook)

def role_h(a, l):
    P = f"H{l}"
    XW = 32; AQ = 64; AV = 96; SXR = 112; ST = list(range(48, 64)); H_X = 0x14000; vRD = 127; vNEG = 122
    S_PEND = 75; S_E = 76; S_LDS = 77; S_W4 = 78; S_W2 = 92; S_ZB = 93; S_ZP = 94
    a(f"""s_lshl_b32 s60, s{S_L}, 3
    s_add_u32 s60, s60, s{S_R}
    s_lshl_b32 s60, s60, 5
    s_add_u32 s60, s60, s{S_H}
    s_lshl_b32 s{S_ZB}, s60, 13
    s_add_u32 s{S_ZB}, s{S_ZB}, {ZV}
    s_lshl_b32 s{S_W2}, s{S_WAVE}, 11
    s_add_u32 s60, s{S_ZB}, s{S_W2}
    v_lshlrev_b32 v1, 4, v0
    v_mov_b32 v8, -1
    v_mov_b32 v9, -1
    v_mov_b32 v10, -1
    v_mov_b32 v11, -1""")
    for k in range(4):
        a(f"""buffer_store_dwordx4 v[8:11], v1, {WS}, s60 offen sc1
        buffer_store_dwordx4 v[8:11], v1, {WS}, s60 offen offset:1024 sc1
        s_add_u32 s60, s60, {2*128*2048}""")
    arrive(a)
    late_start(a, DLY[3])
    a(f"""v_lshlrev_b32 v1, 4, v0
    v_and_b32 v14, 15, v0
    v_lshrrev_b32 v15, 4, v0
    v_mov_b32 v2, 0x3f803f80
    v_mov_b32 v3, v2
    v_mov_b32 v4, v2
    v_mov_b32 v5, v2
    v_lshlrev_b32 v6, 2, v0
    v_and_b32 v7, 31, v0
    v_lshlrev_b32 v10, 2, v7
    v_lshlrev_b32 v7, 3, v7
    s_lshl_b32 s60, s{S_WAVE}, 8
    s_add_u32 s60, s60, {H_ST}
    v_add_u32 v10, s60, v10
    v_lshl_add_u32 v8, v14, 2, s60
    v_lshl_add_u32 v9, v15, 4, s60
    s_mov_b32 s70, {hex(f2u(C1))}
    s_mov_b32 s71, 0x3f803f80""")
    a(f"""s_lshl_b32 s60, s{S_H}, 8
    s_lshl_b32 s61, s{S_WAVE}, 6
    s_add_u32 s60, s60, s61
    v_lshlrev_b32 v16, 18, v15
    v_lshl_add_u32 v16, v14, 2, v16
    v_add_u32 v16, s60, v16""")
    jobs = [dict(pre=(lambda plo=plo: srd(a, 12, plo, 512 * 8192)), vaddr=16, pitch=8192, rowfn=xmap_row, nu=16,
                 dest=((lambda c, u, j, mi=mi: ("a", mi * 128 + c * 64 + u * 4 + j)) if mi < 2 else (lambda c, u, j: ("v", 128 + c * 64 + u * 4 + j))))
            for mi, plo in enumerate((20, 22, 24))]
    load_w_multi(a, SW, jobs, 32)
    WQK = lambda t, u: f"a[{t*64+u*4}:{t*64+u*4+3}]"
    WV = lambda c, u: f"v[{128+c*64+u*4}:{128+c*64+u*4+3}]"
    for j in range(4): a(f"v_mov_b32 v{32+j}, s71")
    for u in range(16):
        for t in range(4):
            a(f"v_mfma_f32_16x16x32_bf16 v[{64+t*4}:{67+t*4}], {WQK(t,u)}, v[32:35], {'0' if u==0 else f'v[{64+t*4}:{67+t*4}]'}")
        for c in range(2):
            a(f"v_mfma_f32_16x16x32_bf16 v[{80+c*4}:{83+c*4}], v[32:35], {WV(c,u)}, {'0' if u==0 else f'v[{80+c*4}:{83+c*4}]'}")
    a(f"""s_lshl_b32 s60, s{S_WAVE}, 12
    s_add_u32 s60, s60, {H_CS}
    v_add_u32 v11, s60, v1""")
    for t in range(4): a(f"ds_write_b128 v11, v[{64+t*4}:{67+t*4}] offset:{t*1024}")
    a("v_mov_b32 v12, v80\nv_mov_b32 v13, v84")
    a(f"""s_and_b32 s72, s{S_WAVE}, 1
    s_mul_i32 s60, s{S_WAVE}, 3072
    s_add_u32 s60, s60, {H_MSK}
    v_add_u32 v16, s60, v1
    v_mov_b32 v40, {hex(NEG)}
    v_cmp_gt_u32 vcc, 2, v15
    v_cndmask_b32 v32, 0, v40, vcc
    v_mov_b32 v33, v32
    v_mov_b32 v34, v32
    v_mov_b32 v35, v32
    ds_write_b128 v16, v[32:35]
    v_lshlrev_b32 v41, 2, v15""")
    for r in range(4):
        a(f"""v_add_u32 v42, {r}, v41
        v_cmp_gt_u32 vcc, v42, v14
        v_cndmask_b32 v{36+r}, 0, v40, vcc""")
    a(f"s_cmp_eq_u32 s72, 0\ns_cselect_b64 vcc, -1, 0")
    for r in range(4):
        a(f"v_cndmask_b32 v{44+r}, 0, v{36+r}, vcc\nv_cndmask_b32 v{48+r}, v{36+r}, v40, vcc")
    a("ds_write_b128 v16, v[44:47] offset:1024\nds_write_b128 v16, v[48:51] offset:2048\ns_waitcnt lgkmcnt(0)")
    a(f"""s_lshl_b32 s{S_W4}, s{S_WAVE}, 12
    s_mov_b32 s{S_LDS}, {H_X}
    s_mov_b32 s{S_PEND}, 0
    v_mov_b32 v{vNEG}, -1
    v_mov_b32 v{vNEG+1}, -1""")
    a.split()
    stamp(a, 0)
    wait_all(a, 32, 33)
    if l == 1 and PW: prewarm(a, "H")
    if l == 0 and PWI: pw_setup(a, 95, 96, 14)
    stamp(a, 1)
    tick_init(a)
    SWD = {4: S_W4, 2: S_W2}
    def xaddr():
        a(f"""s_lshl_b32 s62, s63, 1
        s_add_u32 s62, s62, s{S_R}
        s_lshl_b32 s64, s62, 15
        s_add_u32 s64, s64, {X0 if l == 0 else X2}
        s_lshl_b32 s65, s62, 12
        s_add_u32 s65, s65, {XST + (0 if l == 0 else 3) * 64 * 4096}""")

    def qkv(sreg_i):
        Le = a.newlabel("Learly")
        a(f"s_cmp_lg_u32 s{S_E}, 0\ns_cbranch_scc1 {Le}")
        if l == 1:
            a(f"s_lshl_b32 s64, s63, 8\ns_lshl_b32 s60, s{S_R}, 7\ns_add_u32 s64, s64, s60\ns_add_u32 s64, s64, {FX2}")
            poll_pend(a, 6, "s64", 32, "0xffffffff", 10, S_PEND, 4)
        else:
            a("s_waitcnt vmcnt(0)")
            flush_pend(a, S_PEND, 4)
        xaddr()
        vm = Q(a, "vmcnt", 63)
        x_issue(a, 64, 65, S_LDS, SWD, ST, 1, 6, vm)
        a.label(Le)
        a(f"""s_lshl_b32 s62, s{sreg_i}, 1
        s_add_u32 s62, s62, s{S_R}
        s_and_b32 s73, s{sreg_i}, 1
        s_mul_i32 s73, s73, 24576
        s_mov_b32 s{S_E}, 0
        v_add_u32 v{vRD}, {H_X}, v1""")
        def mf(f, x):
            u, tt = f >> 1, f & 1; first = u == 0
            ms = []
            for t in (2, 3):
                d = AQ + (t * 2 + tt) * 4
                ms.append(f"v_mfma_f32_16x16x32_bf16 v[{d}:{d+3}], {WQK(t,u)}, v[{x}:{x+3}], {'0' if first else f'v[{d}:{d+3}]'}")
            for c in range(2):
                d = AV + (c * 2 + tt) * 4
                ms.append(f"v_mfma_f32_16x16x32_bf16 v[{d}:{d+3}], v[{x}:{x+3}], {WV(c,u)}, {'0' if first else f'v[{d}:{d+3}]'}")
            return ms
        def mfq(f, x):
            u, tt = f >> 1, f & 1; first = u == 0
            return [f"v_mfma_f32_16x16x32_bf16 v[{AQ+(t*2+tt)*4}:{AQ+(t*2+tt)*4+3}], {WQK(t,u)}, v[{x}:{x+3}], " +
                    ('0' if first else f'v[{AQ+(t*2+tt)*4}:{AQ+(t*2+tt)*4+3}]') for t in range(2)]
        def xhook(f, i):
            if f == ("chunk", 0):
                a(f"""v_lshlrev_b32 v124, 3, v0
                buffer_store_dwordx2 v[{vNEG}:{vNEG+1}], v124, {WS}, s{S_ZP} offen sc1
                buffer_store_dwordx2 v[{vNEG}:{vNEG+1}], v124, {WS}, s{S_ZP} offen offset:512 sc1
                buffer_store_dwordx2 v[{vNEG}:{vNEG+1}], v124, {WS}, s{S_ZP} offen offset:1024 sc1""")
                for k in range(3): vm.issue(("pz", k))
            if f == HFL and i == 0:
                L = a.newlabel("Lnf")
                a(f"s_cmp_eq_u32 s{S_PEND}, 0\ns_cbranch_scc1 {L}\ns_waitcnt vmcnt(3)")
                flush_pend(a, S_PEND, 4)
                a.label(L, pad=False)
        tick(a, 0)
        stamp2(a, 3, 62, 124, 125)
        gemm_x(a, vm, vRD, XW, mf, ST, 1, SXR, 10, xhook)
        if l == 0 and PWI: pw_step(a, 95, 96, 14, 15, sreg_i)
        tick(a, 1)
        for t in range(4): a(f"ds_read_b128 v[{16+t*4}:{19+t*4}], v11 offset:{t*1024}")
        a(f"""ds_read_b32 v116, v8
        ds_read_b32 v117, v8 offset:128
        ds_read_b32 v118, v8 offset:64
        ds_read_b32 v119, v8 offset:192
        ds_read_b128 v[32:35], v9
        ds_read_b128 v[36:39], v9 offset:64
        ds_read_b128 v[40:43], v9 offset:128
        ds_read_b128 v[44:47], v9 offset:192
        s_lshl_b32 s64, s62, 5
        s_add_u32 s64, s64, s{S_H}
        s_lshl_b32 s64, s64, 2
        s_add_u32 s64, s64, s{S_WAVE}
        s_add_u32 s64, s64, {l*64*32*4}
        s_lshl_b32 s65, s64, 12
        s_add_u32 s65, s65, {KV}
        s_and_b32 s65, s65, {KVM}
        s_lshl_b32 s64, s64, 2
        s_lshl_b32 s60, s{S_WAVE}, 11
        s_add_u32 s60, s60, s73
        v_add_u32 v125, s60, v1
        s_waitcnt lgkmcnt(4)""")
        def lnqk(m):
            for t in (2 * m, 2 * m + 1):
                for tt in range(2):
                    d = AQ + (t * 2 + tt) * 4; ab = 116 + 2 * tt
                    for h2 in range(2):
                        a(f"v_pk_mul_f32 v[120:121], v[{16+t*4+2*h2}:{17+t*4+2*h2}], v[{ab}:{ab+1}] op_sel:[0,1] op_sel_hi:[1,1]")
                        a(f"v_pk_fma_f32 v[{d+2*h2}:{d+2*h2+1}], v[{d+2*h2}:{d+2*h2+1}], v[{ab}:{ab+1}], v[120:121] op_sel:[0,0,0] op_sel_hi:[1,0,1]")
            for tt in range(2):
                d0 = AQ + ((2 * m) * 2 + tt) * 4; d1 = AQ + ((2 * m + 1) * 2 + tt) * 4
                for r in range(4):
                    a(f"v_cvt_pk_bf16_f32 v{48+m*8+tt*4+r}, v{d0+r}, v{d1+r}")
        lnqk(1)
        a(f"""buffer_store_dwordx4 v[56:59], v1, {WS}, s65 offen sc1
        buffer_store_dwordx4 v[60:63], v1, {WS}, s65 offen offset:1024 sc1
        s_waitcnt lgkmcnt(0)
        ds_write_b128 v125, v[56:59] offset:8192
        ds_write_b128 v125, v[60:63] offset:9216""")
        for c in range(2):
            for tt in range(2):
                d = AV + (c * 2 + tt) * 4
                for h2 in range(2):
                    A_ = 32 + tt * 4 + 2 * h2; B_ = 40 + tt * 4 + 2 * h2
                    a(f"v_pk_mul_f32 v[120:121], v[{B_}:{B_+1}], v[12:13] op_sel:[0,{c}] op_sel_hi:[1,{c}]")
                    a(f"v_pk_fma_f32 v[{d+2*h2}:{d+2*h2+1}], v[{d+2*h2}:{d+2*h2+1}], v[{A_}:{A_+1}], v[120:121]")
            for tt in range(2):
                d = AV + (c * 2 + tt) * 4
                a(f"v_cvt_pk_bf16_f32 v{24+c*4+tt*2}, v{d}, v{d+1}\nv_cvt_pk_bf16_f32 v{25+c*4+tt*2}, v{d+2}, v{d+3}")
            a(f"""buffer_store_dwordx4 v[{24+c*4}:{27+c*4}], v1, {WS}, s65 offen offset:{2048+c*1024} sc1
            ds_write_b128 v125, v[{24+c*4}:{27+c*4}] offset:{16384+c*1024}""")
        a(f"s_add_u32 s{S_PEND}, s64, {FQKV + FQB}")
        stamp2(a, 4, 62, 120, 121)
        def qhook(f, i):
            if f == HQF and i == 0:
                a("s_waitcnt vmcnt(0)")
                flush_pend(a, S_PEND, 4)
        lgq = Q(a, "lgkmcnt", 15)
        gemm_lds(a, 32, [], vRD, XW, 4, mfq, [], vm, 0, 1, qhook, lg=lgq)
        lnqk(0)
        a("""ds_write_b128 v125, v[48:51]
        ds_write_b128 v125, v[52:55] offset:1024""")
        tick(a, 2)

    def att(sreg_i):
        Z = 16; Q = 32; K = 48; V = 80; VM = 96; T = 104; PT = 116; PM = 120; O = 16; SM = 32
        a(f"""s_lshl_b32 s68, s{sreg_i}, 1
        s_add_u32 s68, s68, s{S_R}
        s_and_b32 s73, s{sreg_i}, 1
        s_mul_i32 s73, s73, 24576
        s_lshl_b32 s69, s68, 5
        s_add_u32 s69, s69, s{S_H}
        s_add_u32 s69, s69, {l*64*32}
        s_lshl_b32 s69, s69, 4
        s_and_b32 s66, s{sreg_i}, 3
        s_lshl_b32 s66, s66, 19
        s_add_u32 s66, s66, s{S_ZB}
        s_add_u32 s{S_ZP}, s66, s{S_W2}
        s_waitcnt lgkmcnt(0)
        s_barrier""")
        a(f"""s_mul_i32 s60, s{S_WAVE}, 3072
        s_add_u32 s60, s60, {H_MSK}
        v_add_u32 v124, s60, v1
        ds_read_b128 v[{T}:{T+3}], v124
        ds_read_b128 v[{T+4}:{T+7}], v124 offset:1024
        ds_read_b128 v[{T+8}:{T+11}], v124 offset:2048
        s_lshl_b32 s60, s72, 10
        s_add_u32 s60, s60, s73
        v_add_u32 v124, s60, v1
        v_add_u32 v125, s73, v1
        s_lshr_b32 s67, s{S_WAVE}, 1
        s_lshl_b32 s60, s67, 12
        s_add_u32 s60, s60, s73
        v_add_u32 v126, s60, v1""")
        for u in range(4):
            a(f"ds_read_b128 v[{Q+u*4}:{Q+u*4+3}], v124 offset:{u*2048}")
            for tt in range(2):
                a(f"ds_read_b128 v[{K+(u*2+tt)*4}:{K+(u*2+tt)*4+3}], v125 offset:{8192+u*2048+tt*1024}")
        for e in range(4):
            a(f"ds_read_b128 v[{V+e*4}:{V+e*4+3}], v126 offset:{16384+e*1024}")
        a("s_waitcnt lgkmcnt(0)")
        for u in range(4):
            for tt in range(2):
                a(f"v_mfma_f32_16x16x32_bf16 v[{T+4+tt*4}:{T+7+tt*4}], v[{K+(u*2+tt)*4}:{K+(u*2+tt)*4+3}], v[{Q+u*4}:{Q+u*4+3}], v[{T+4+tt*4}:{T+7+tt*4}]")
        tick(a, 3)
        L = a.newlabel("Lzp"); L2 = a.newlabel("Lzp"); L3 = a.newlabel("Lzp"); L4 = a.newlabel("Lzp"); L5 = a.newlabel("Lzp")
        a(f"v_lshlrev_b32 v124, 11, v0\ns_mov_b64 exec, 0xf\ns_branch {L2}")
        a.label(L)
        a(f"s_sleep {SLP}")
        a.label(L2)
        a(f"buffer_load_dword v125, v124, {WS}, s66 offen offset:1020 sc1")
        timeout(a, 11)
        a("s_waitcnt vmcnt(0)")
        flush_pend(a, S_PEND, 4)
        a(f"""v_cmp_eq_u32 vcc, -1, v125
        s_cbranch_vccnz {L}
        s_mov_b64 exec, -1""")
        tick(a, 4)
        stamp2(a, 5, 68, 124, 125)
        a.label(L3)
        if l == 1:
            a(f"""s_lshl_b32 s64, s63, 8
            s_lshl_b32 s60, s{S_R}, 7
            s_add_u32 s64, s64, s60
            s_add_u32 s64, s64, {FX2}
            v_and_b32 v124, 124, v6
            buffer_load_dword v126, v124, {WS}, s64 offen sc1""")
        for u in range(4):
            a(f"s_add_u32 s60, s66, {u*2048}\nbuffer_load_dwordx4 v[{Z+u*4}:{Z+u*4+3}], v1, {WS}, s60 offen sc1")
        def vm_loads():
            a(f"s_lshl_b32 s60, s67, 12\ns_add_u32 s60, s60, s66")
            for aa in range(2):
                for c in range(2):
                    a(f"buffer_load_dwordx2 v[{VM+(aa*2+c)*2}:{VM+(aa*2+c)*2+1}], v7, {WS}, s60 offen offset:{aa*2048+1024+c*256} sc1")
        vm_loads()
        timeout(a, 12)
        a("s_waitcnt vmcnt(4)")
        a(f"v_max3_u32 v124, v{Z}, v{Z+1}, v{Z+2}\nv_max3_u32 v125, v{Z+3}, v{Z+4}, v{Z+5}")
        for k in range(6, 14, 4):
            a(f"v_max3_u32 v124, v124, v{Z+k}, v{Z+k+1}\nv_max3_u32 v125, v125, v{Z+k+2}, v{Z+k+3}")
        a(f"""v_max3_u32 v124, v124, v{Z+14}, v{Z+15}
        v_max_u32 v124, v124, v125
        v_cmp_eq_u32 vcc, -1, v124
        s_cbranch_vccnz {L3}""")
        for u in range(4):
            a(f"v_mfma_f32_16x16x32_bf16 v[{T}:{T+3}], v[{Z+u*4}:{Z+u*4+3}], v[{Q+u*4}:{Q+u*4+3}], v[{T}:{T+3}]")
        a(f"s_cmp_ge_u32 s63, 32\ns_cbranch_scc1 {L4}")
        if l == 1:
            a(f"v_cmp_eq_u32 vcc, 0, v126\ns_cbranch_vccnz {L4}")
        xaddr()
        x_issue(a, 64, 65, S_LDS, SWD, ST, 1, 6)
        a(f"s_mov_b32 s{S_E}, 1\ns_waitcnt vmcnt(12)\ns_branch {L5}")
        a.label(L4)
        a("s_waitcnt vmcnt(0)")
        a.label(L5)
        tick(a, 5)
        softmax12(a, T, 124, 125, 70, PT, PM)
        L6 = a.newlabel("Lvp"); L7 = a.newlabel("Lvp")
        a.label(L6)
        a(f"""v_max3_u32 v124, v{VM}, v{VM+1}, v{VM+2}
        v_max3_u32 v125, v{VM+3}, v{VM+4}, v{VM+5}
        v_max3_u32 v124, v124, v{VM+6}, v{VM+7}
        v_max_u32 v124, v124, v125
        v_cmp_eq_u32 vcc, -1, v124
        s_cbranch_vccz {L7}""")
        vm_loads()
        timeout(a, 13)
        a(f"s_waitcnt vmcnt(0)\ns_branch {L6}")
        a.label(L7)
        tick(a, 6)
        K = 2
        a(f"v_mfma_f32_16x16x32_bf16 v[{SM}:{SM+3}], v[{K}:{K+3}], v[{PT}:{PT+3}], 0")
        a(f"v_mfma_f32_16x16x16_bf16 v[{SM}:{SM+3}], v[{K}:{K+1}], v[{PM}:{PM+1}], v[{SM}:{SM+3}]")
        for e in range(4):
            a(f"v_mfma_f32_16x16x32_bf16 v[{O+e*4}:{O+e*4+3}], v[{V+e*4}:{V+e*4+3}], v[{PT}:{PT+3}], 0")
        for e in range(4):
            a(f"v_mfma_f32_16x16x16_bf16 v[{O+e*4}:{O+e*4+3}], v[{VM+e*2}:{VM+e*2+1}], v[{PM}:{PM+1}], v[{O+e*4}:{O+e*4+3}]")
        a(f"v_rcp_f32 v{SM}, v{SM}")
        for e in range(4):
            for h2 in range(2):
                a(f"v_pk_mul_f32 v[{O+e*4+2*h2}:{O+e*4+2*h2+1}], v[{O+e*4+2*h2}:{O+e*4+2*h2+1}], v[{SM}:{SM+1}] op_sel_hi:[1,0]")
        for aa in range(2):
            for r in range(4):
                a(f"v_cvt_pk_bf16_f32 v{40+aa*4+r}, v{O+aa*8+r}, v{O+aa*8+4+r}")
        a(f"""s_lshl_b32 s60, s68, 18
        s_add_u32 s60, s60, {OF + (0 if OFAL else l)*64*262144}
        s_lshl_b32 s61, s{S_H}, 13
        s_add_u32 s60, s60, s61
        s_lshl_b32 s61, s67, 12
        s_add_u32 s60, s60, s61
        s_lshl_b32 s61, s72, 10
        s_add_u32 s60, s60, s61
        buffer_store_dwordx4 v[40:43], v1, {WS}, s60 offen sc1
        buffer_store_dwordx4 v[44:47], v1, {WS}, s60 offen offset:2048 sc1
        s_lshl_b32 s61, s{S_WAVE}, 2
        s_add_u32 s69, s69, s61
        s_add_u32 s{S_PEND}, s69, {FO}""")
        stamp2(a, 6, 68, 124, 125)

    a(f"""s_mov_b32 s74, -2
    s_mov_b32 s{S_E}, 0
    s_add_u32 s{S_ZP}, s{S_ZB}, s{S_W2}
    s_add_u32 s{S_ZP}, s{S_ZP}, {3 << 19}""")
    a.label(f"L_{P}_loop")
    a(f"s_add_u32 s63, s74, 2\ns_cmp_lt_i32 s74, 0\ns_cbranch_scc1 L_{P}_noatt")
    att(74)
    a(f"s_branch L_{P}_q")
    a.label(f"L_{P}_noatt")
    a("s_barrier")
    a.label(f"L_{P}_q")
    a(f"s_cmp_ge_u32 s63, 32\ns_cbranch_scc1 L_{P}_skip")
    qkv(63)
    a.label(f"L_{P}_skip")
    a(f"s_add_u32 s74, s74, 1\ns_cmp_lt_i32 s74, 32\ns_cbranch_scc1 L_{P}_loop")
    a("s_waitcnt vmcnt(0)")
    flush_pend(a, S_PEND, 4)
    stamp(a, 2)
    tick_dump(a)
    a("s_endpgm")
```

```python
from gen_common import *
from gen_h import gemm_xloop, xmap_row, gemm_x, x_issue, stats_finish
OXL = int(os.environ.get('OXL', '92')); OXC = int(os.environ.get('OXC', '40')); OFL = int(os.environ.get('OFL', '12')); OXD = int(os.environ.get('OXD', '2'))
GLEAD = int(os.environ.get('GLEAD', '6')); GEV = int(os.environ.get('GEV', '3'))
import math, os
nat = lambda u, i: 32 * u + i

def rs_write(a, ACC, c, vw):
    return [f"ds_write2st64_b32 v{vw}, v{ACC+(c*2)*4+j}, v{ACC+(c*2+1)*4+j} offset0:{j*64+c} offset1:{j*64+8+c}" for j in range(4)]

def rs_read_sum(a, R, vr):
    for src in range(4):
        for k in range(0, 16, 2):
            a(f"ds_read2st64_b32 v[{R+src*16+k}:{R+src*16+k+1}], v{vr} offset0:{src*16+k} offset1:{src*16+k+1}")
    a("s_waitcnt lgkmcnt(15)")
    a("s_waitcnt lgkmcnt(8)") if False else None
    a("s_waitcnt lgkmcnt(0)")
    for k in range(0, 16, 2):
        a(f"v_pk_add_f32 v[{R+k}:{R+k+1}], v[{R+k}:{R+k+1}], v[{R+16+k}:{R+17+k}]")
        a(f"v_pk_add_f32 v[{R+32+k}:{R+33+k}], v[{R+32+k}:{R+33+k}], v[{R+48+k}:{R+49+k}]")
    for k in range(0, 16, 2):
        a(f"v_pk_add_f32 v[{R+k}:{R+k+1}], v[{R+k}:{R+k+1}], v[{R+32+k}:{R+33+k}]")

def finish_x(a, Y, RES, T, stats=True):
    for j in range(8):
        a(f"v_lshlrev_b32 v{T+2*j}, 16, v{RES+j}\nv_and_b32 v{T+2*j+1}, 0xffff0000, v{RES+j}")
    for j in range(8):
        a(f"v_pk_add_f32 v[{Y+2*j}:{Y+2*j+1}], v[{Y+2*j}:{Y+2*j+1}], v[{T+2*j}:{T+2*j+1}]")
    for j in range(8):
        a(f"v_cvt_pk_bf16_f32 v{RES+j}, v{Y+2*j}, v{Y+2*j+1}")
    if stats:
        for j in range(8):
            a(f"v_lshlrev_b32 v{T+2*j}, 16, v{RES+j}\nv_and_b32 v{T+2*j+1}, 0xffff0000, v{RES+j}")
        part_stats(a, T, T + 8, T + 16)

def lane_consts(a):
    a(f"""v_lshlrev_b32 v1, 4, v0
    v_lshlrev_b32 v6, 2, v0
    v_and_b32 v14, 15, v0
    v_lshrrev_b32 v15, 4, v0
    v_mov_b32 v4, 1
    v_mov_b32 v5, 0""")

def round_stats(a, ACC, RES, T, stats=True):
    for tt in range(2):
        for r in range(4):
            a(f"v_cvt_pk_bf16_f32 v{RES+tt*4+r}, v{ACC+tt*4+r}, v{ACC+8+tt*4+r}")
    if stats:
        for j in range(8):
            a(f"v_lshlrev_b32 v{T+2*j}, 16, v{RES+j}\nv_and_b32 v{T+2*j+1}, 0xffff0000, v{RES+j}")
        part_stats2(a, list(range(T, T + 8)), list(range(T + 8, T + 16)), T + 16)

def wcol_addr(a, vdst, s_n):
    a(f"""v_lshlrev_b32 v{vdst}, 13, v15
    v_lshrrev_b32 v8, 2, v14
    v_lshl_add_u32 v{vdst}, v8, 6, v{vdst}
    v_and_b32 v8, 3, v14
    v_lshl_add_u32 v{vdst}, v8, 2, v{vdst}
    s_lshl_b32 s60, s{s_n}, 8
    s_lshl_b32 s61, s{S_WAVE}, 4
    s_add_u32 s60, s60, s61
    v_add_u32 v{vdst}, s60, v{vdst}""")

def fast_mode(a, s_fast, l, vt=8, va=9):
    a(f"""v_mov_b32 v{va}, {4*(6+l)}
    buffer_load_dword v{vt}, v{va}, {DBG}, 0 offen sc1
    s_waitcnt vmcnt(0)
    v_readfirstlane_b32 s60, v{vt}
    s_cmp_ge_u32 s60, 32
    s_cselect_b32 s{s_fast}, 1, 0""")
    if "slow" in os.environ.get("GENOPT", ""): a(f"s_mov_b32 s{s_fast}, 0")

def role_o(a, l):
    P = f"O{l}"
    S_G=62; S_N=63; S_S=64; S_FAST=65; S_E=66; S_NF=67; S_PEND=68; S_OF=69; S_XW=(70,71,72); S_XPR=73; S_RES=74; S_X1=75; S_ST=76; S_FX1=77
    S_W8=78; S_LDS=92; S_SEL=93; S_W2=101; S_W4=94; S_RW=95; S_RR=96; S_OFN=97; S_XA=96
    ACC=16; XW=32; XPR=64; RES=76; K0=80; K1=84; T=88; vPOLL=2; vST=3; vRD=10; vFL=12; vNEG=100
    FASTREG[0] = S_FAST
    lane_consts(a)
    a(f"""s_lshr_b32 s{S_G}, s{S_H}, 2
    s_and_b32 s{S_N}, s{S_H}, 3
    s_lshl_b32 s60, s{S_N}, 2
    s_add_u32 s60, s60, s{S_WAVE}
    s_lshl_b32 s60, s60, 14
    s_lshl_b32 s61, s{S_L}, 21
    s_add_u32 s60, s60, s61
    s_add_u32 s60, s60, {XP}
    s_lshl_b32 s61, s{S_G}, 12
    s_add_u32 s{S_XPR}, s60, s61""")
    for j in range(1, 4):
        a(f"""s_xor_b32 s61, s{S_G}, {j}
        s_lshl_b32 s61, s61, 12
        s_add_u32 s{S_XW[j-1]}, s60, s61""")
    for k in range(4): a(f"v_mov_b32 v{vNEG+k}, -1")
    a(f"s_mov_b32 s60, s{S_XPR}")
    for r in range(8):
        for j in range(1, 4):
            a(f"buffer_store_dwordx4 v[{vNEG}:{vNEG+3}], v1, {WS}, s60 offen offset:{j*1024} sc1")
        a("s_add_u32 s60, s60, 0x40000")
    arrive(a)
    late_start(a, DLY[1], DLY[2])
    lane_consts(a)
    a(f"""s_cmp_ge_u32 s{S_G}, 2
    s_cselect_b32 s{SEL_LO}, 0x07060302, s{SEL_LO}
    s_cselect_b32 s{SEL_HI}, 0x05040100, s{SEL_HI}
    s_mov_b32 s{S_SEL}, 0x01000c0c
    s_cselect_b32 s{S_SEL}, 0x03020c0c, s{S_SEL}""")
    wcol_addr(a, 7, S_N)
    a(f"s_lshl_b32 s60, s{S_G}, 20\nv_add_u32 v7, s60, v7")
    srd(a, 12, 26, 4096 * 1024)
    a(f"s_lshl_b32 s{S_NF}, s{S_N}, 18")
    load_w_ntype(a, SW, 7, 1024, nat, 32, lambda c, u, j: ("a", c * 128 + u * 4 + j), 16, nbanks=4, ug=2, sx=S_NF)
    a.split()
    a(f"""s_lshl_b32 s{S_OF}, s{S_G}, 16
    s_add_u32 s{S_OF}, s{S_OF}, {OF + (0 if OFAL else l)*64*262144}
    s_lshl_b32 s{S_W8}, s{S_WAVE}, 13
    s_lshl_b32 s{S_W4}, s{S_WAVE}, 12
    s_lshl_b32 s{S_W2}, s{S_WAVE}, 11
    s_lshl_b32 s61, s{S_G}, 7
    s_add_u32 s61, s61, {FO + l*64*512}
    v_and_b32 v8, 31, v0
    v_lshl_add_u32 v{vPOLL}, v8, 2, s61
    v_lshlrev_b32 v{vST}, 9, v15
    v_lshl_add_u32 v{vST}, v14, 4, v{vST}
    s_lshl_b32 s60, s{S_N}, 2
    s_add_u32 s60, s60, s{S_WAVE}
    s_and_b32 s96, s{S_G}, 1
    s_lshr_b32 s97, s{S_G}, 1
    s_lshl_b32 s61, s60, 11
    s_lshl_b32 s95, s96, 10
    s_add_u32 s61, s61, s95
    s_add_u32 s{S_RES}, s61, {X0 if l == 0 else X2}
    s_lshl_b32 s95, s97, 3
    s_add_u32 s61, s61, s95
    s_add_u32 s{S_X1}, s61, {X1 + l*64*32768}
    s_lshl_b32 s61, s96, 12
    s_bfe_u32 s95, s60, 0x20001
    s_lshl_b32 s95, s95, 10
    s_add_u32 s61, s61, s95
    s_lshr_b32 s95, s60, 3
    s_lshl_b32 s95, s95, 8
    s_add_u32 s61, s61, s95
    s_and_b32 s95, s60, 1
    s_lshl_b32 s95, s95, 3
    s_add_u32 s61, s61, s95
    s_lshl_b32 s95, s97, 2
    s_add_u32 s61, s61, s95
    s_add_u32 s{S_ST}, s61, {XST1 + l*64*8192}
    s_lshl_b32 s61, s60, 2
    s_add_u32 s61, s61, s{S_G}
    s_lshl_b32 s61, s61, 2
    s_add_u32 s{S_FX1}, s61, {FX1 + l*64*256}
    s_lshl_b32 s95, s96, 10
    v_add_u32 v{vRD}, s95, v1
    v_xor_b32 v{vRD+1}, 0x400, v{vRD}
    s_mov_b32 s{S_S}, 0
    s_mov_b32 s{S_E}, 0
    s_mov_b32 s{S_PEND}, 0
    s_lshl_b32 s{S_NF}, s{S_N}, 14
    s_mov_b32 s{S_LDS}, 0
    s_mov_b32 s{S_RW}, 0
    s_mov_b32 s{S_RR}, 0""")
    for k in range(4): a(f"v_mov_b32 v{vNEG+k}, -1")
    stamp(a, 0, 8, 9)
    wait_all(a, 8, 9, S_FAST)
    if l == 1 and PW: prewarm(a, "L", 8, 9)
    stamp(a, 1, 8, 9)
    tick_init(a)
    def xp_loads():
        for j in range(1, 4):
            r = XPR + (j - 1) * 4
            a(f"buffer_load_dwordx4 v[{r}:{r+3}], v1, {WS}, s{S_XA} offen offset:{j*1024} sc1")
    def xp_check():
        a(f"""v_max3_u32 v{T}, v{XPR}, v{XPR+1}, v{XPR+2}
        v_max3_u32 v{T+1}, v{XPR+3}, v{XPR+4}, v{XPR+5}
        v_max3_u32 v{T}, v{T}, v{XPR+6}, v{XPR+7}
        v_max3_u32 v{T+1}, v{T+1}, v{XPR+8}, v{XPR+9}
        v_max3_u32 v{T}, v{T}, v{XPR+10}, v{XPR+11}
        v_max_u32 v{T}, v{T}, v{T+1}
        v_cmp_eq_u32 vcc, -1, v{T}""")
    K0 = ACC; Y = K1
    def finalize():
        for r in range(4):
            a(f"v_add_f32 v{K0+r}, v{K0+r}, v{XPR+r}\nv_add_f32 v{XPR+4+r}, v{XPR+4+r}, v{XPR+8+r}")
        for r in range(4):
            a(f"v_add_f32 v{K0+r}, v{K0+r}, v{XPR+4+r}")
        a(f"""v_cvt_pk_bf16_f32 v{Y}, v{K0}, v{K0+1}
        v_cvt_pk_bf16_f32 v{Y+1}, v{K0+2}, v{K0+3}""")
        mode_stores(a, [f"buffer_store_dwordx2 v[{Y}:{Y+1}], v1, {WS}, s{S_X1} offen {{m}}"])
        a(f"""v_lshlrev_b32 v{T}, 16, v{Y}
        v_and_b32 v{T+1}, 0xffff0000, v{Y}
        v_lshlrev_b32 v{T+2}, 16, v{Y+1}
        v_and_b32 v{T+3}, 0xffff0000, v{Y+1}
        v_mul_f32 v{T+5}, v{T}, v{T}
        v_add_f32 v{T+4}, v{T}, v{T+1}
        v_fmac_f32 v{T+5}, v{T+1}, v{T+1}
        v_add_f32 v{T+4}, v{T+4}, v{T+2}
        v_fmac_f32 v{T+5}, v{T+2}, v{T+2}
        v_add_f32 v{T+4}, v{T+4}, v{T+3}
        v_fmac_f32 v{T+5}, v{T+3}, v{T+3}""")
        swapadd(a, 16, T + 4, T + 5, T + 4)
        a(f"v_mov_b32 v{T+5}, v{T+4}")
        swapadd(a, 32, T + 4, T + 5, T + 4)
        mode_stores(a, ["s_mov_b64 exec, 0xffffffff",
                        f"buffer_store_dword v{T+4}, v{vST}, {WS}, s{S_ST} offen {{m}}",
                        "s_mov_b64 exec, -1"] +
                       [f"buffer_store_dwordx4 v[{vNEG}:{vNEG+3}], v1, {WS}, s{S_XA} offen offset:{j*1024} {{m}}" for j in range(1, 4)])
        stamp2(a, 5, S_S, 8, 9)
        a(f"""s_mov_b32 s{S_PEND}, s{S_FX1}
        s_add_u32 s{S_X1}, s{S_X1}, 32768
        s_add_u32 s{S_ST}, s{S_ST}, 8192
        s_add_u32 s{S_FX1}, s{S_FX1}, 256""")
    chunks = [2, 2, 4, 8]
    SWD = {8: S_W8, 4: S_W4, 2: S_W2}
    resld = f"buffer_load_dwordx4 v[{RES}:{RES+3}], v1, {WS}, s{S_RES} offen sc1"
    a(f"s_branch L_{P}_poll")
    a.label(f"L_{P}_slp")
    a(f"s_sleep {SLP}")
    a.label(f"L_{P}_poll")
    a(f"buffer_load_dword v{vFL}, v{vPOLL}, {WS}, 0 offen sc1")
    timeout(a, 30)
    a("s_waitcnt vmcnt(0)")
    flush_pend(a, S_PEND, 4)
    a(f"""v_cmp_eq_u32 vcc, 0, v{vFL}
    s_cbranch_vccnz L_{P}_slp""")
    a.label(f"L_{P}_iss")
    vm = Q(a, "vmcnt", 63)
    cnt = {}
    a(resld)
    for c, t in dma_list(S_OF, S_LDS, chunks, SWD, S_NF):
        a(t); cnt[c] = cnt.get(c, 0) + 1; vm.issue(("d", c, cnt[c]))
    a.label(f"L_{P}_go")
    tick(a, 0)
    stamp2(a, 3, S_S, 8, 9)
    a(f"""buffer_load_dword v{vFL}, v{vPOLL}, {WS}, 0 offen offset:512 sc1
    s_add_u32 s{S_OF}, s{S_OF}, 262144
    s_add_u32 s{S_RES}, s{S_RES}, 32768
    s_xor_b32 s{S_LDS}, s{S_LDS}, 0x10000""")
    vm.issue("top")
    dma = [(0, resld)] + dma_list(S_OF, S_LDS, chunks, SWD, S_NF)
    st = {"on": False, "n": 0}
    A2 = 104
    def mf(f, x):
        if f >= 64:
            u = f - 64; d = ACC if not (u & 1) else A2
            return [f"v_mfma_f32_16x16x32_bf16 v[{d}:{d+3}], a[{u*4}:{u*4+3}], v[{x}:{x+3}], " + ("0" if u == 1 else f"v[{d}:{d+3}]")]
        u, tt = f >> 1, f & 1
        return [f"v_mfma_f32_16x16x32_bf16 v[{ACC+(c*2+tt)*4}:{ACC+(c*2+tt)*4+3}], a[{c*128+u*4}:{c*128+u*4+3}], v[{x}:{x+3}], " +
                ("0" if u == 0 else f"v[{ACC+(c*2+tt)*4}:{ACC+(c*2+tt)*4+3}]") for c in range(2) if (c or tt)]
    def hook(f, i):
        if f == ("chunk", 2): tick(a, 4)
        if f == ("chunk", 0):
            tick(a, 3)
            for r in range(4): a(f"v_perm_b32 v{ACC+r}, v{RES+r}, v{RES+r}, s{S_SEL}")
            L = a.newlabel("Lm")
            a(f"s_cmp_lg_u32 s{S_E}, 0\ns_cbranch_scc1 {L}")
            flush_pend(a, S_PEND, 4)
            a.label(L, pad=False)
        elif f == OFL and i == 0:
            L = a.newlabel("Lm")
            a(f"s_cmp_eq_u32 s{S_PEND}, 0\ns_cbranch_scc1 {L}\ns_waitcnt vmcnt(4)")
            flush_pend(a, S_PEND, 4)
            a.label(L, pad=False)
        elif f == ("chunk", 3):
            a(f"""s_waitcnt vmcnt(0)
            v_cmp_eq_u32 vcc, 0, v{vFL}
            s_cmp_ge_u32 s{S_S}, 63
            s_cselect_b64 s[60:61], -1, 0
            s_or_b64 vcc, vcc, s[60:61]
            s_cselect_b32 s{S_E}, 0, 1""")
            tick(a, 5)
            if prof_on(): a(f"s_lshl_b32 s60, s{S_E}, 10\ns_add_u32 s91, s91, s60")
            st["on"] = True
        elif f == 64:
            tick(a, 6)
            assert not dma
            a(f"s_add_u32 s60, s{S_XW[0]}, s{S_RW}\ns_add_u32 s61, s{S_XW[1]}, s{S_RW}\ns_add_u32 s100, s{S_XW[2]}, s{S_RW}\ns_add_u32 s{S_XA}, s{S_XPR}, s{S_RW}")
            a("s_nop 3")
            mode_stores(a, [f"buffer_store_dwordx4 v[{ACC+j*4}:{ACC+j*4+3}], v1, {WS}, s{(60,61,100)[j-1]} offen offset:{j*1024} {{m}}" for j in (2, 1, 3)])
        elif f == OXL:
            xp_loads()
            a(f"buffer_load_dword v{vFL}, v{vPOLL}, {WS}, 0 offen offset:512 sc1")
        elif st["on"] and dma:
            st["n"] += 1
            if st["n"] % OEV == 0:
                c, t = dma.pop(0)
                L = a.newlabel("Ld")
                ls = t.strip().split("\n")
                a("\n".join(ls[:-1] + [f"s_cbranch_vccnz {L}", ls[-1]]))
                a.label(L, pad=False)
    gemm_lds(a, 96, chunks, vRD, XW, 8, mf, [], vm, 0, 1, hook, alt=True, fmap=lambda f: f if f < 64 else 2 * (f - 64))
    tick(a, 1)
    a(f"""v_xor_b32 v{vRD}, 0x10000, v{vRD}
    v_xor_b32 v{vRD+1}, 0x10000, v{vRD+1}
    v_add_u32 v{vPOLL}, 512, v{vPOLL}
    s_add_u32 s{S_RW}, s{S_RW}, 0x40000
    s_and_b32 s{S_RW}, s{S_RW}, 0x1fffff""")
    a.flush()
    stamp2(a, 4, S_S, 8, 9)
    for r in range(4): a(f"v_add_f32 v{ACC+r}, v{ACC+r}, v{A2+r}")
    a(f"s_branch L_{P}_xp1")
    a.label(f"L_{P}_xp")
    xp_loads()
    a(f"buffer_load_dword v{vFL}, v{vPOLL}, {WS}, 0 offen sc1")
    timeout(a, 31)
    a.label(f"L_{P}_xp1", pad=False)
    a("s_waitcnt vmcnt(1)")
    xp_check()
    a(f"s_cbranch_vccnz L_{P}_xp")
    tick(a, 2)
    finalize()
    tick(a, 7)
    a(f"""s_add_u32 s{S_S}, s{S_S}, 1
    s_cmp_lg_u32 s{S_E}, 0
    s_cbranch_scc1 L_{P}_go
    s_cmp_ge_u32 s{S_S}, 64
    s_cbranch_scc1 L_{P}_end
    s_waitcnt vmcnt(5)
    v_cmp_eq_u32 vcc, 0, v{vFL}
    s_cbranch_vccnz L_{P}_poll
    s_branch L_{P}_iss""")
    a.label(f"L_{P}_end")
    a("s_waitcnt vmcnt(0)")
    flush_pend(a, S_PEND, 4)
    stamp(a, 2, 8, 9)
    tick_dump(a, 8, 9)
    a("s_endpgm")

F_CS = 0; F_BI = 24576; F_ST = 49152
K0 = -2.0 * math.sqrt(2.0 / math.pi) * 1.4426950408889634
K1 = K0 * 0.044715
def role_f1(a, l):
    P = f"F{l}"
    XW = 32; ACC = 64; SXR = 112; vRD = 2; CSR = 88; BIR = [16, 20, 24, 28, 48, 52]
    S_WG = 62; S_U = (63, 66, 67); S_I = 68; S_K0 = 70; S_K1 = 72; S_FAST = 75; S_PEND = 76; S_LDS = 77; S_W4 = 78; S_W2 = 92
    FASTREG[0] = S_FAST
    pmap = lambda u, i: xmap_row(u, 2 * (i & 3) + (i >> 2))
    arrive(a)
    late_start(a, DLY[1], DLY[2])
    lane_consts(a)
    a(f"""s_sub_u32 s60, s{S_H}, 16
    s_lshr_b32 s60, s60, 1
    s_lshl_b32 s60, s60, 2
    s_add_u32 s{S_WG}, s60, s{S_WAVE}
    s_mov_b32 s{S_U[0]}, s{S_WG}
    s_add_u32 s{S_U[1]}, s{S_WG}, 16
    s_add_u32 s{S_U[2]}, s{S_WG}, 32
    s_min_u32 s{S_U[2]}, s{S_U[2]}, 42
    v_and_b32 v7, 31, v0
    v_lshlrev_b32 v10, 2, v7
    s_lshl_b32 s60, s{S_WAVE}, 8
    s_add_u32 s60, s60, {F_ST}
    v_add_u32 v10, s60, v10
    v_lshl_add_u32 v8, v14, 2, s60
    s_mul_i32 s60, s{S_WAVE}, 6144
    v_add_u32 v11, s60, v1
    s_mov_b32 s71, 0x3f803f80
    s_mov_b32 s{S_K0}, {hex(f2u(K0))}
    s_mov_b32 s{S_K1}, {hex(f2u(K1))}
    s_mov_b32 s73, s{S_K1}
    v_mov_b32 v12, s{S_K0}
    v_mov_b32 v13, s{S_K0}
    v_mul_u32_u24 v9, {32*2752}, v15
    v_lshl_add_u32 v9, v14, 2, v9""")
    srd(a, 12, 32, 512 * 2752)
    for k in range(3):
        a(f"s_lshl_b32 s60, s{S_U[k]}, 6\nv_add_u32 v16, s60, v9")
        if k < 2: df = lambda c, u, j, k=k: ("a", k * 128 + c * 64 + u * 4 + j)
        else: df = lambda c, u, j: ("v", 128 + c * 64 + u * 4 + j)
        load_w_ntype(a, SW, 16, 2752, pmap, 16, df, 32, nbanks=3, ug=2)
    Wt = lambda t, u: (f"a[{t*64+u*4}:{t*64+u*4+3}]" if t < 4 else f"v[{128+(t-4)*64+u*4}:{128+(t-4)*64+u*4+3}]")
    for j in range(4): a(f"v_mov_b32 v{32+j}, s71")
    for u in range(16):
        for t in range(6):
            a(f"v_mfma_f32_16x16x32_bf16 v[{64+t*4}:{67+t*4}], {Wt(t,u)}, v[32:35], {'0' if u==0 else f'v[{64+t*4}:{67+t*4}]'}")
    for t in range(6): a(f"ds_write_b128 v11, v[{64+t*4}:{67+t*4}] offset:{F_CS+t*1024}")
    srd(a, 12, 34, 2752)
    a("v_lshlrev_b32 v16, 4, v15")
    for k in range(3):
        a(f"s_lshl_b32 s60, s{S_U[k]}, 6\nbuffer_load_dwordx4 v[{32+k*4}:{35+k*4}], v16, {SW}, s60 offen")
    a("s_waitcnt vmcnt(0)")
    for k in range(3):
        for r in range(4):
            a(f"v_lshlrev_b32 v{64+k*8+r}, 16, v{32+k*4+r}\nv_and_b32 v{68+k*8+r}, 0xffff0000, v{32+k*4+r}")
    for t in range(6): a(f"ds_write_b128 v11, v[{64+t*4}:{67+t*4}] offset:{F_BI+t*1024}")
    a("s_waitcnt lgkmcnt(0)")
    a.split()
    a(f"s_lshl_b32 s60, s{S_R}, 10")
    for k in range(3):
        a(f"s_lshl_b32 s{S_U[k]}, s{S_U[k]}, 11\ns_add_u32 s{S_U[k]}, s{S_U[k]}, {HF + l*64*HFS}\ns_add_u32 s{S_U[k]}, s{S_U[k]}, s60")
    S_XB = 93; S_FB = 69
    a(f"""s_lshl_b32 s{S_W4}, s{S_WAVE}, 10
    s_lshl_b32 s{S_W2}, s{S_WAVE}, 11
    s_add_u32 s{S_XB}, s60, {X1 + l*64*32768}
    s_mov_b32 s{S_LDS}, 0x10000
    s_mov_b32 s{S_PEND}, 0
    s_mov_b32 s94, 0x55555555
    s_lshl_b32 s94, s94, s{S_R}
    s_mov_b32 s95, s94
    s_lshl_b32 s96, s{S_R}, 12
    s_add_u32 s96, s96, {XST1 + l*64*8192}
    s_lshl_b32 s60, s{S_R}, 6
    v_add_u32 v8, s60, v8
    s_lshl_b32 s61, s{S_WG}, 2
    s_add_u32 s{S_FB}, s60, s61
    s_add_u32 s{S_FB}, s{S_FB}, {FH + l*64*128}
    v_add_u32 v{vRD}, 0x10000, v1
    v_lshlrev_b32 v3, 3, v0""")
    for t in range(6):
        a(f"ds_read_b128 v[{CSR+t*4}:{CSR+3+t*4}], v11 offset:{F_CS+t*1024}")
    stamp(a, 0, 32, 33)
    wait_all(a, 32, 33, S_FAST)
    if l == 1 and PW: prewarm(a, "L")
    stamp(a, 1, 32, 33)
    tick_init(a)
    a(f"s_mov_b32 s{S_I}, 0")
    pfl = f"buffer_load_dword v58, v56, {WS}, 0 offen {{m}}"
    if FPF:
        a(f"""s_and_b32 s60, s{S_SLOT}, 7
        s_lshl_b32 s60, s60, 2
        s_add_u32 s60, s60, s{S_WAVE}
        s_lshl_b32 s61, s60, 8
        s_add_u32 s61, s61, {XST1 + l*64*8192}
        s_lshl_b32 s60, s60, 10
        s_add_u32 s60, s60, {X1 + l*64*32768}
        v_and_b32 v59, 7, v0
        v_lshlrev_b32 v59, 7, v59
        v_and_b32 v56, 1, v0
        v_lshlrev_b32 v56, 7, v56
        v_add_u32 v56, s61, v56
        v_mov_b32 v57, 8192
        v_add_u32 v60, s60, v59
        v_mov_b32 v61, 32768
        v_cmp_gt_u32 vcc, 32, v0
        v_cndmask_b32 v56, v56, v60, vcc
        v_cndmask_b32 v57, v57, v61, vcc
        v_mov_b32 v61, {HFS}
        v_cmp_gt_u32 vcc, 24, v0
        v_cndmask_b32 v57, v57, v61, vcc""")
        for k in (2, 1, 0):
            a(f"v_add_u32 v60, s{S_U[k]}, v59\nv_cmp_gt_u32 vcc, {8*k+8}, v0\nv_cndmask_b32 v56, v56, v60, vcc")
        for k in range(FPF):
            mode_stores(a, [pfl]); a("v_add_u32 v56, v56, v57")
    a.label(f"L_{P}_loop")
    a(f"s_lshl_b32 s64, s{S_I}, 8\ns_add_u32 s64, s64, {FX1 + l*64*256}")
    poll_pend(a, 6, "s64", 46, "s[94:95]", 40, S_PEND, 4)
    a(f"""s_lshl_b32 s64, s{S_I}, 15
    s_add_u32 s64, s64, s{S_XB}
    s_lshl_b32 s65, s{S_I}, 13
    s_add_u32 s65, s65, s96""")
    def mf(f, x):
        return [f"v_mfma_f32_16x16x32_bf16 v[{ACC+t*4}:{ACC+t*4+3}], {Wt(t,f)}, v[{x}:{x+3}], " +
                ("0" if f == 0 else f"v[{ACC+t*4}:{ACC+t*4+3}]") for t in range(6)]
    tick(a, 0)
    stamp2(a, 3, S_I, 32, 33)
    STR = [16 + 2 * k for k in range(8)] + [48 + 2 * k for k in range(8)]
    vm = Q(a, "vmcnt", 63)
    FCH = [1, 1, 2]
    cnt = {}
    for c, t in dma_list2(64, S_LDS, FCH, {1: S_W4, 2: S_W2}):
        a(t); cnt[c] = cnt.get(c, 0) + 1; vm.issue(("d", c, cnt[c]))
    for k in range(4):
        a(f"buffer_load_dwordx4 v[{16+4*k}:{19+4*k}], v1, {WS}, s65 offen offset:{k*1024} sc1"); vm.issue(("st", k))
    if FPF:
        mode_stores(a, [pfl]); vm.issue("pf")
        a(f"s_cmp_ge_u32 s{S_I}, {63 - FPF}\ns_cselect_b32 s60, 0, -1\nv_and_b32 v59, s60, v57\nv_add_u32 v56, v56, v59")
    regs = list(range(16, 32)); fl = []
    while len(regs) > 1:
        nx = []
        for i in range(0, len(regs), 2):
            d = SXR if len(regs) == 2 else regs[i]
            fl.append(f"v_add_f32 v{d}, v{regs[i]}, v{regs[i+1]}"); nx.append(d)
        regs = nx
    st = {"on": False}
    lg = Q(a, "lgkmcnt", 15)
    def hook(f, i):
        if f == 6 and i == 0:
            vm.wait(("st", 3)); st["on"] = True
        if st["on"] and fl: a(fl.pop(0))
        if f == 10 and i == 0:
            assert not fl
            a(f"v_mov_b32 v{SXR+1}, v{SXR}")
            swapadd(a, 16, SXR, SXR + 1, SXR)
        if f == 12 and i == 0:
            stats_finish(a, SXR, SXR + 1, 10, 512); lg.issue("s0"); lg.issue("s1")
        if f == 13 and i < 6:
            a(f"ds_read_b128 v[{BIR[i]}:{BIR[i]+3}], v11 offset:{F_BI+i*1024}"); lg.issue(("bi", i))
        if f == 15 and i == 0:
            a("ds_read_b32 v116, v8\nds_read_b32 v117, v8 offset:128")
    gemm_lds(a, 16, FCH, vRD, XW, 4, mf, [], vm, 0, 1, hook, lg=lg)
    a(f"v_xor_b32 v{vRD}, 0x8000, v{vRD}\ns_xor_b32 s{S_LDS}, s{S_LDS}, 0x8000")
    tick(a, 1)
    a(f"s_mul_i32 s74, s{S_I}, {HFS}\ns_waitcnt lgkmcnt(0)")
    for k in range(3):
        for t in (2 * k, 2 * k + 1):
            d = ACC + t * 4; ab = 116
            for h2 in range(2):
                x = d + 2 * h2; tp = 120 + ((t & 1) * 2 + h2) * 2
                a(f"v_pk_fma_f32 v[{tp}:{tp+1}], v[{CSR+t*4+2*h2}:{CSR+1+t*4+2*h2}], v[{ab}:{ab+1}], v[{BIR[t]+2*h2}:{BIR[t]+1+2*h2}] op_sel:[0,1,0] op_sel_hi:[1,1,1]")
                a(f"v_pk_fma_f32 v[{x}:{x+1}], v[{x}:{x+1}], v[{ab}:{ab+1}], v[{tp}:{tp+1}] op_sel:[0,0,0] op_sel_hi:[1,0,1]")
        d = ACC + k * 8
        for q in range(4):
            a(f"v_pk_mul_f32 v[{120+2*q}:{121+2*q}], v[{d+2*q}:{d+2*q+1}], v[{d+2*q}:{d+2*q+1}]")
        for q in range(4):
            a(f"v_pk_fma_f32 v[{120+2*q}:{121+2*q}], v[{120+2*q}:{121+2*q}], s[{S_K1}:{S_K1+1}], v[12:13]")
        for q in range(4):
            a(f"v_pk_mul_f32 v[{120+2*q}:{121+2*q}], v[{120+2*q}:{121+2*q}], v[{d+2*q}:{d+2*q+1}]")
        for q in range(8): a(f"v_exp_f32 v{120+q}, v{120+q}")
        for q in range(4):
            a(f"v_pk_add_f32 v[{120+2*q}:{121+2*q}], v[{120+2*q}:{121+2*q}], 1.0 op_sel_hi:[1,0]")
        for q in range(8): a(f"v_rcp_f32 v{120+q}, v{120+q}")
        for q in range(4):
            a(f"v_pk_mul_f32 v[{d+2*q}:{d+2*q+1}], v[{120+2*q}:{121+2*q}], v[{d+2*q}:{d+2*q+1}]")
        for r in range(4):
            a(f"v_cvt_pk_bf16_f32 v{32+k*4+r}, v{d+r}, v{d+4+r}")
        a(f"s_add_u32 s60, s74, s{S_U[k]}")
        mode_stores(a, [f"buffer_store_dwordx4 v[{32+k*4}:{35+k*4}], v1, {WS}, s60 offen {{m}}"])
    tick(a, 2)
    a(f"s_lshl_b32 s60, s{S_I}, 7\ns_add_u32 s{S_PEND}, s60, s{S_FB}")
    stamp2(a, 4, S_I, 44, 45)
    a(f"s_add_u32 s{S_I}, s{S_I}, 1\ns_cmp_lt_u32 s{S_I}, 64\ns_cbranch_scc1 L_{P}_loop")
    a("s_waitcnt vmcnt(0)")
    flush_pend(a, S_PEND, 4)
    stamp(a, 2, 32, 33)
    tick_dump(a, 32, 33)
    a("s_endpgm")

def role_f2(a, l):
    P = f"G{l}"
    B2 = 16; ACC = 24; XW = 40; RES = 72; T = 80; vRD = 10
    S_N = 62; S_I = 68; S_U = 67; S_PEND = 63; S_W4 = 72; S_W2 = 73; S_LDS = 75
    arrive(a)
    late_start(a, DLY[1], DLY[2])
    lane_consts(a)
    a(f"s_sub_u32 s{S_N}, s{S_H}, 24\ns_lshr_b32 s{S_N}, s{S_N}, 1")
    wcol_addr(a, 7, S_N)
    srd(a, 12, 36, 1376 * 1024)
    df = lambda c, u, j: (("a", c * 128 + u * 4 + j) if u < 32 else ("v", 168 + c * 44 + (u - 32) * 4 + j))
    load_w_ntype(a, SW, 7, 1024, nat, 43, df, 24, nbanks=4, ug=2)
    Wt = lambda c, u: (f"a[{c*128+u*4}:{c*128+u*4+3}]" if u < 32 else f"v[{168+c*44+(u-32)*4}:{168+c*44+(u-32)*4+3}]")
    srd(a, 12, 38, 1024)
    a(f"""s_lshl_b32 s60, s{S_N}, 8
    s_lshl_b32 s61, s{S_WAVE}, 4
    s_add_u32 s60, s60, s61
    v_lshlrev_b32 v7, 6, v15
    buffer_load_dwordx4 v[24:27], v7, {SW}, s60 offen
    s_waitcnt vmcnt(0)""")
    for j in range(4):
        a(f"v_lshlrev_b32 v{B2+j}, 16, v{24+j}\nv_and_b32 v{B2+4+j}, 0xffff0000, v{24+j}")
    a.split()
    S_W3 = 74; S_UO = 76; S_FB = 77
    a(f"""s_lshl_b32 s{S_U}, s{S_N}, 2
    s_add_u32 s{S_U}, s{S_U}, s{S_WAVE}
    s_lshl_b32 s{S_W4}, s{S_WAVE}, 10
    s_lshl_b32 s{S_W2}, s{S_WAVE}, 11
    s_mul_i32 s{S_W3}, s{S_WAVE}, 3072
    s_lshl_b32 s{S_UO}, s{S_U}, 11
    s_lshl_b32 s60, s{S_R}, 10
    s_add_u32 s{S_UO}, s{S_UO}, s60
    s_add_u32 s66, s60, {HF + l*64*HFS}
    s_lshl_b32 s{S_FB}, s{S_R}, 6
    s_mov_b32 s{S_LDS}, 0
    s_mov_b32 s{S_PEND}, 0
    v_mov_b32 v{vRD}, v1
    v_lshlrev_b32 v9, 9, v15
    v_lshl_add_u32 v9, v14, 4, v9
    s_lshl_b32 s60, s{S_R}, 8
    s_lshl_b32 s61, s{S_WAVE}, 2
    s_add_u32 s60, s60, s61
    v_add_u32 v9, s60, v9""")
    if l == 1:
        srd(a, 52, 40, 2048 * 1024)
        a(f"""v_lshl_add_u32 v7, v14, 10, v7
        s_lshl_b32 s60, s{S_N}, 8
        s_lshl_b32 s61, s{S_WAVE}, 4
        s_add_u32 s60, s60, s61
        s_lshl_b32 s61, s{S_R}, 14
        s_add_u32 s60, s60, s61
        v_add_u32 v7, s60, v7""")
    stamp(a, 0, 32, 33)
    wait_all(a, 32, 33)
    if l == 1 and PW: prewarm(a, "L")
    stamp(a, 1, 32, 33)
    tick_init(a)
    a(f"s_mov_b32 s{S_I}, 0")
    a.label(f"L_{P}_loop")
    a(f"s_lshl_b32 s69, s{S_I}, 7\ns_add_u32 s69, s69, s{S_FB}\ns_add_u32 s64, s69, {FH + l*64*128}")
    poll_pend(a, 6, "s64", 8, "0xffff", 50, S_PEND, 4)
    tick(a, 0)
    stamp2(a, 3, S_I, 32, 33)
    a(f"""s_mul_i32 s64, s{S_I}, {HFS}
    s_add_u32 s64, s64, s66
    s_lshl_b32 s70, s{S_I}, 15
    s_add_u32 s71, s70, s{S_UO}
    s_add_u32 s60, s71, {X1 + l*64*32768}
    buffer_load_dwordx4 v[{RES}:{RES+3}], v1, {WS}, s60 offen sc1""")
    chunks = [1, 1, 2, 2, 2, 3]
    vm = Q(a, "vmcnt", 63); vm.issue("res")
    dma = dma_list2(64, S_LDS, chunks, {1: S_W4, 2: S_W2, 3: S_W3})
    def pre():
        vm.wait("res")
        for c in range(2):
            for h2 in range(2):
                d = ACC + c * 4 + 2 * h2; sr = RES + c * 2 + h2
                a(f"v_lshlrev_b32 v{d}, 16, v{sr}\nv_and_b32 v{d+1}, 0xffff0000, v{sr}")
        for c in range(2):
            for r in range(4):
                a(f"v_add_f32 v{ACC+c*4+r}, v{ACC+c*4+r}, v{B2+c*4+r}")
    def mf(f, x):
        return [f"v_mfma_f32_16x16x32_bf16 v[{ACC+c*4}:{ACC+c*4+3}], {Wt(c,f)}, v[{x}:{x+3}], v[{ACC+c*4}:{ACC+c*4+3}]" for c in range(2)]
    gemm_lds(a, 43, chunks, vRD, XW, 8, mf, dma, vm, GLEAD, GEV, pre=pre)
    a(f"v_xor_b32 v{vRD}, 0x10000, v{vRD}\ns_xor_b32 s{S_LDS}, s{S_LDS}, 0x10000")
    tick(a, 1)
    for r in range(4):
        a(f"v_cvt_pk_bf16_f32 v{RES+r}, v{ACC+r}, v{ACC+4+r}")
    if l == 0:
        a(f"""s_add_u32 s60, s71, {X2}
        buffer_store_dwordx4 v[{RES}:{RES+3}], v1, {WS}, s60 offen sc1""")
        for j in range(4):
            a(f"v_lshlrev_b32 v{T+2*j}, 16, v{RES+j}\nv_and_b32 v{T+2*j+1}, 0xffff0000, v{RES+j}")
        a(f"v_add_f32 v{T+8}, v{T}, v{T+1}\nv_mul_f32 v{T+9}, v{T}, v{T}")
        for i in range(1, 8):
            if i >= 2: a(f"v_add_f32 v{T+8}, v{T+8}, v{T+i}")
            a(f"v_fmac_f32 v{T+9}, v{T+i}, v{T+i}")
        swapadd(a, 16, T + 8, T + 9, T + 8)
        a(f"v_mov_b32 v{T+9}, v{T+8}")
        swapadd(a, 32, T + 8, T + 9, T + 8)
        a(f"""s_lshl_b32 s60, s{S_I}, 12
        s_lshl_b32 s61, s{S_N}, 10
        s_add_u32 s60, s60, s61
        s_add_u32 s60, s60, {XST + 3*64*4096}
        s_mov_b64 exec, 0xffffffff
        buffer_store_dword v{T+8}, v9, {WS}, s60 offen sc1
        s_mov_b64 exec, -1
        s_lshl_b32 s60, s{S_U}, 2
        s_add_u32 s69, s69, s60
        s_add_u32 s{S_PEND}, s69, {FX2}""")
    else:
        a(f"buffer_store_dwordx4 v[{RES}:{RES+3}], v7, {SO}, s70 offen")
    tick(a, 2)
    stamp2(a, 4, S_I, 32, 33)
    a(f"""s_add_u32 s{S_I}, s{S_I}, 1
    s_cmp_lt_u32 s{S_I}, 64
    s_cbranch_scc1 L_{P}_loop
    s_waitcnt vmcnt(0)""")
    flush_pend(a, S_PEND, 4)
    stamp(a, 2, 32, 33)
    tick_dump(a, 32, 33)
    a("s_endpgm")
```

```python
import os, sys
from gen_common import *
import gen_h
roles = os.environ.get("ROLES", "H0,H1,C0,C1,O0,O1,F0,F1,G0,G1").split(",")
a = Asm()
prologue(a)
a(f"""s_lshr_b32 s60, s{S_SLOT}, 5
s_and_b32 s61, s{S_SLOT}, 31
s_cmp_lt_u32 s60, 2
s_cbranch_scc1 L_dispC
s_cmp_lt_u32 s60, 6
s_cbranch_scc1 L_dispH
s_sub_u32 s{S_L}, s60, 6
s_mov_b32 s{S_H}, s61
s_and_b32 s{S_R}, s61, 1
s_cmp_lt_u32 s61, 16
s_cbranch_scc1 L_dispO
s_cmp_lt_u32 s61, 24
s_cbranch_scc1 L_dispF
s_cmp_eq_u32 s{S_L}, 0
s_cbranch_scc1 L_G0
s_branch L_G1""")
a.label("L_dispF")
a(f"s_cmp_eq_u32 s{S_L}, 0\ns_cbranch_scc1 L_F0\ns_branch L_F1")
a.label("L_dispO")
a(f"s_cmp_eq_u32 s{S_L}, 0\ns_cbranch_scc1 L_O0\ns_branch L_O1")
a.label("L_dispC")
a(f"s_mov_b32 s{S_L}, s60\ns_mov_b32 s{S_H}, s61\ns_cmp_eq_u32 s60, 0\ns_cbranch_scc1 L_C0\ns_branch L_C1")
a.label("L_dispH")
a(f"""s_sub_u32 s60, s60, 2
s_lshl_b32 s60, s60, 3
s_bfe_u32 s{S_H}, s61, 0x30001
s_add_u32 s{S_H}, s{S_H}, s60
s_and_b32 s{S_R}, s61, 1
s_lshr_b32 s{S_L}, s61, 4
s_cmp_eq_u32 s{S_L}, 0
s_cbranch_scc1 L_H0
s_branch L_H1""")
impl = {"H": gen_h.role_h}
try:
    import gen_c; impl["C"] = gen_c.role_c
except ImportError: pass
try:
    import gen_o; impl["O"] = gen_o.role_o; impl["F"] = gen_o.role_f1; impl["G"] = gen_o.role_f2
except ImportError: pass
epilogue(a)
for r in "CHOFG":
    en = [l for l in range(2) if f"{r}{l}" in roles and r in impl]
    ABORT[0] = f"L_abort{r}"; FASTREG[0] = None
    for l in range(2):
        if l not in en:
            a.label(f"L_{r}{l}")
            arrive(a)
            a("s_endpgm")
    if not en: continue
    for l in en: a.label(f"L_{r}{l}")
    impl[r](Gate(a, "pre"), en[0])
    a.flush()
    if len(en) == 2: a(f"s_cmp_eq_u32 s{S_L}, 1\ns_cbranch_scc1 L_{r}1_main")
    for l in en:
        a.label(f"L_{r}{l}_main")
        impl[r](Gate(a, "main"), l)
    epilogue(a, ABORT[0], False)
hdr = HEADER.replace("; @launch grid", f"; @launch kernel={NAME}_kernel grid")
out = sys.argv[1] if len(sys.argv) > 1 else f"cdna_kernels/{NAME}.s"
open(out, "w").write(hdr + a.text() + FOOTER)
print("lines", len(a.lines))
```
